```python
import torch

def _softmax(x, axis=-1):
    return torch.softmax(x, dim=axis)
def _gelu(x):
    return torch.nn.functional.gelu(x, approximate="tanh")
def _silu(x):
    return torch.nn.functional.silu(x)
def _sigmoid(x):
    return torch.sigmoid(x)
def _layernorm(x, axis=-1, eps=1e-5):
    m = x.mean(dim=axis, keepdim=True)
    v = x.var(dim=axis, keepdim=True, unbiased=False)
    return (x - m) / torch.sqrt(v + eps)
def _scatter_add(tgt, idx, src, axis=0):
    return tgt.clone().index_add_(axis, idx, src)
def _segment_sum(src, seg, n):
    out = torch.zeros((n,) + src.shape[1:], dtype=src.dtype)
    return out.index_add_(0, seg, src)
def _pad(x, pw):
    flat = tuple(v for pair in reversed(pw) for v in pair)
    return torch.nn.functional.pad(x, flat)

kernel_name = 'parallel_sum__linear_kernel_hedgehog__glu_gated_swiglu__prompt'

def setup_inputs():

    _w = (lambda a: (lambda t: t.to(torch.bfloat16) if t.is_floating_point() else t)(torch.as_tensor(a)))
    def _A_setup():
        B, S, D, H = 1, 2048, 640, 32
        Dh = D // H
        return {
            "x": _w((lambda *s: torch.randn(*s, dtype=torch.bfloat16) * 0.05)(B, S, D)),
            "wqkv": _w((lambda *s: torch.randn(*s, dtype=torch.bfloat16) * 0.2)(D, 3 * D)),
            "w_phi": _w((lambda *s: torch.randn(*s, dtype=torch.bfloat16) * 0.2)(H, Dh, Dh) * (Dh ** -0.5)),
            "wo": _w((lambda *s: torch.randn(*s, dtype=torch.bfloat16) * 0.05)(D, D)),
        }
    _A_in = _A_setup()

    def _B_setup():
        B, S, D, F = 1, 2048, 640, 1536
        return {
            "x": _w((lambda *s: torch.randn(*s, dtype=torch.bfloat16) * 0.05)(B, S, D)),
            "w1": _w((lambda *s: torch.randn(*s, dtype=torch.bfloat16) * 0.4)(D, F) * (2.0 / D) ** 0.5),
            "w3": _w((lambda *s: torch.randn(*s, dtype=torch.bfloat16) * 0.4)(D, F) * (2.0 / D) ** 0.5),
            "w2": _w((lambda *s: torch.randn(*s, dtype=torch.bfloat16) * 0.4)(F, D) * (2.0 / F) ** 0.5),
        }
    _B_in = _B_setup()

    return {
        "A_x": _A_in["x"],
        "A_wqkv": _A_in["wqkv"],
        "A_w_phi": _A_in["w_phi"],
        "A_wo": _A_in["wo"],
        "B_x": _B_in["x"],
        "B_w1": _B_in["w1"],
        "B_w3": _B_in["w3"],
        "B_w2": _B_in["w2"],
    }

def reference(A_x, A_wqkv, A_w_phi, A_wo, B_x, B_w1, B_w3, B_w2):
    def _A_ref(x, wqkv, w_phi, wo):
        B, S, D = x.shape
        H = 32; Dh = D // H
        qkv = (lambda x, *d: x.permute(*d))((x @ wqkv).reshape(B, S, 3, H, Dh), 2, 0, 3, 1, 4)
        q, k, v = qkv[0], qkv[1], qkv[2]
        pq = torch.einsum("bhsd,hdf->bhsf", q, w_phi)
        pk = torch.einsum("bhsd,hdf->bhsf", k, w_phi)
        phi_q = torch.concatenate([_softmax(pq, axis=-1), _softmax(-pq, axis=-1)], axis=-1)
        phi_k = torch.concatenate([_softmax(pk, axis=-1), _softmax(-pk, axis=-1)], axis=-1)
        kv = torch.einsum("bhsf,bhsd->bhfd", phi_k, v)
        z  = torch.einsum("bhsf->bhf", phi_k)
        num = torch.einsum("bhqf,bhfd->bhqd", phi_q, kv)
        den = torch.einsum("bhqf,bhf->bhq", phi_q, z)[..., None] + 1e-6
        o = num / den
        return (lambda x, *d: x.permute(*d))(o, 0, 2, 1, 3).reshape(B, S, D) @ wo

    def _B_ref(x, w1, w3, w2):
        gate = torch.einsum("bsd,df->bsf", x, w1)
        up = torch.einsum("bsd,df->bsf", x, w3)
        h = _silu(gate) * up
        out = torch.einsum("bsf,fd->bsd", h, w2)
        return out

    x = A_x
    xn = _layernorm(x, axis=-1)
    return x + _A_ref(xn, A_wqkv, A_w_phi, A_wo) + _B_ref(xn, B_w1, B_w3, B_w2)
```

```python
import re
def v(i, n=1): return f'v{i}' if n == 1 else f'v[{i}:{i+n-1}]'
def a(i, n=1): return f'a{i}' if n == 1 else f'a[{i}:{i+n-1}]'
def s(i, n=1): return f's{i}' if n == 1 else f's[{i}:{i+n-1}]'

_R = re.compile(r'^-?\|?(?:abs\()?([vas])(?:(\d+)|\[(\d+):(\d+)\])\)?\|?$')
def regs(op):
    op = op.strip()
    if op in ('vcc', 'vcc_lo', 'vcc_hi'): return {('s', 'vcc')}
    if op in ('exec', 'exec_lo', 'exec_hi'): return {('s', 'exec')}
    if op == 'm0': return {('s', 'm0')}
    m = _R.match(op)
    if not m: return set()
    if m.group(2) is not None: return {(m.group(1), int(m.group(2)))}
    return {(m.group(1), i) for i in range(int(m.group(3)), int(m.group(4)) + 1)}

TRANS = ('v_exp_f32', 'v_log_f32', 'v_rcp_f32', 'v_rsq_f32', 'v_sqrt_f32')
class I:
    def __init__(self, txt):
        self.txt = txt
        t = txt.split(';')[0].strip()
        self.op = t.split()[0] if t else ''
        rest = t[len(self.op):].strip()
        ops = [x.strip() for x in re.split(r',(?![^\[]*\])', rest)] if rest else []
        self.mods = []
        for i, x in enumerate(ops):
            parts = x.split()
            ops[i] = parts[0]; self.mods += parts[1:]
        op = self.op
        self.kind = 'other'; self.w = set(); self.r = set(); self.states = 1
        rs = [regs(x) for x in ops]
        U = lambda l: set().union(*l) if l else set()
        if op == 's_nop': self.states = int(ops[0]) + 1
        elif op.startswith('v_mfma'):
            self.kind = 'mfma'; self.w = rs[0]; self.ab = rs[1] | rs[2]; self.c = rs[3]; self.r = self.ab | self.c
        elif op.startswith('v_'):
            self.kind = 'valu'; self.w = set(rs[0]); self.r = U(rs[1:])
            if 'permlane' in op: self.w |= rs[1]; self.r |= rs[0]
            if op.startswith(('v_fmac', 'v_writelane', 'v_dot2c')) or '_dpp' in op: self.r |= rs[0]
            if op.startswith('v_cndmask') and len(ops) == 3: self.r |= {('s', 'vcc')}
            self.trans = op.startswith(TRANS)
            self.dpp = '_dpp' in op
        elif op.startswith('ds_read'):
            self.kind = 'ds'; self.w = rs[0]; self.r = U(rs[1:])
        elif op.startswith('ds_write'):
            self.kind = 'ds'; self.r = U(rs)
        elif op.startswith(('buffer_load', 'global_load')):
            self.kind = 'vmem'
            if 'lds' in self.mods: self.r = U(rs) | {('s', 'm0')}; self.dma = True
            else: self.w = rs[0]; self.r = U(rs[1:])
        elif op.startswith(('buffer_store', 'global_store', 'buffer_atomic')):
            self.kind = 'vmem'; self.r = U(rs)
            self.wide = rs[0] if op.endswith(('x3', 'x4')) else set()
        elif op.startswith('s_'):
            self.kind = 'salu'
            if op.startswith(('s_cmp', 's_cbranch', 's_branch', 's_waitcnt', 's_barrier', 's_endpgm', 's_sleep', 's_setprio')): self.r = U(rs)
            else: self.w = rs[0] if rs else set(); self.r = U(rs[1:])

def need(p, c):
    n = 0
    vw = {x for x in p.w if x[0] in 'va'}; sw = {x for x in p.w if x[0] == 's'}
    if p.kind == 'valu':
        if c.kind == 'mfma' and vw & c.r: n = max(n, 2)
        if c.kind == 'valu':
            if p.trans and not c.trans and vw & c.r: n = max(n, 1)
            if p.trans and c.trans and vw & c.r: n = max(n, 1)
            if ('permlane' in c.op or c.dpp) and vw & c.r: n = max(n, 2)
            if c.op.startswith(('v_readfirstlane', 'v_readlane')) and vw & c.r: n = max(n, 1)
            if sw & c.r: n = max(n, 4 if c.op.startswith(('v_readlane', 'v_writelane')) else 2)
        if c.kind == 'vmem' and sw & c.r: n = max(n, 5)
        if c.kind == 'salu' and sw & c.r and not c.op.startswith('s_cbranch'): n = max(n, 1)
    if p.kind == 'mfma':
        if c.kind == 'mfma':
            if p.w & c.ab: n = max(n, 8)
            if p.w & c.c and p.w != c.c: n = max(n, 6)
            if p.w & c.w and not (p.w & c.c): n = max(n, 6)
        elif c.kind in ('valu', 'ds', 'vmem'):
            if p.w & (c.r | c.w): n = max(n, 8)
            if c.kind == 'valu' and p.c & c.w: n = max(n, 3)
    if p.kind == 'vmem' and getattr(p, 'wide', None) and c.kind in ('valu', 'ds', 'vmem', 'mfma') and p.wide & c.w: n = max(n, 2)
    if p.kind == 'salu' and ('s', 'm0') in p.w and getattr(c, 'dma', False): n = max(n, 1)
    return n

class Asm:
    def __init__(self):
        self.L = []; self.vm = []; self.h = []; self.pads = 0
    def __call__(self, *ss):
        for x in ss:
            if x.endswith(':') or x.startswith('.') or x.startswith(';'):
                self.L.append(x); continue
            c = I(x)
            d = 0; pad = 0
            for p in reversed(self.h):
                pad = max(pad, need(p, c) - d)
                d += p.states
                if d >= 8: break
            if pad > 0:
                self.pads += pad
                self.L.append(f's_nop {pad-1}'); self.h.append(I(f's_nop {pad-1}'))
            self.L.append(x); self.h.append(c)
            if len(self.h) > 32: self.h = self.h[-16:]
    def vmem(self, txt, tag):
        self(txt); self.vm.append(tag)
    def vm_after(self, tags):
        if isinstance(tags, str): tags = (tags,)
        n = 0
        for t in reversed(self.vm):
            if t in tags: return n
            n += 1
        return None
    def wait_vm(self, tags):
        n = self.vm_after(tags)
        assert n is not None, tags
        self(f's_waitcnt vmcnt({min(n, 63)})')
    def run(self, f):
        if callable(f): f(self)
        elif isinstance(f, str): self(f)
        else:
            for x in f: self.run(x)
    def weave(self, mf, ev):
        ev = sorted(enumerate(ev), key=lambda e: (e[1][0], e[0]))
        k = 0
        while k < len(ev) and ev[k][1][0] <= 0:
            self.run(ev[k][1][1]); k += 1
        for i, m in enumerate(mf):
            self(m)
            while k < len(ev) and (ev[k][1][0] <= i + 1 or i == len(mf) - 1):
                self.run(ev[k][1][1]); k += 1
        assert k == len(ev)
    def text(self): return '\n'.join(self.L) + '\n'

def spread(fill, lo, hi):
    n = len(fill)
    return [(lo + (i + 0.5)/n*(hi - lo), f) for i, f in enumerate(fill)]

def srd(A, r, base, nbytes):
    A(f's_mov_b32 s{r}, s{base}', f's_mov_b32 s{r+1}, s{base+1}', f's_mov_b32 s{r+2}, {nbytes}', f's_mov_b32 s{r+3}, 0x20000')
```

```python
import sys
from asmlib import *

NAME = 'parallel_sum__linear_kernel_hedgehog__glu_gated_swiglu__prompt_kernel'
WS_A, WS_BT, WS_Q, WS_KV, WS_ST, WS_CS, WS_FL, WS_DG, WS_END = 0, 0x900000, 0xC00000, 0xF00000, 0x1000000, 0x1010000, 0x1040000, 0x1080000, 0x1100000
F_E, F_H, F_Q, F_KV, F_O = WS_FL, WS_FL + 0x400, WS_FL + 0x1400, WS_FL + 0x1800, WS_FL + 0x2000
KVP = 3456
BIG = 0x7F000000
SLOT = 53248; SP = 3*SLOT; CSS = 139264; KVB = 143360; KVBP = 144; IMG = 528; RP = 336; RW = 64*RP
LDS = 163840
P_X, P_WQKV, P_WPHI, P_WO, P_W1, P_W3, P_W2, P_OUT, P_DBG, P_WS = 4, 6, 8, 10, 14, 16, 18, 20, 22, 24
sX, sWA, sWB, sWS, sT, sD, sT2 = 28, 32, 36, 40, 44, 48, 52
sW, sROLE, sMT, sCT, sOX, sOW, sMX, sMW = 56, 57, 58, 59, 60, 61, 62, 63
sL, sP0, sP1, sY, sCNT = 80, 82, 83, 84, 85
sB, sA = 86, 91
sM2, sNT, sJ0, sJ1, sJ2 = 95, 96, 97, 98, 99
vL, vL16, vZ, vDX, vDW, vONE, vRX, vRW = 1, 6, 7, 8, 16, 21, 22, 28
vWQ = 8; vDG = 95
ACC = 96
LOG2E = '0x3fb8aa3b'

class Cfg:
    diag = False; cap = 40000; pre = 2; aux = ''; rd_end = 30; split = 7
C = Cfg()

def stamp(A, k):
    if C.diag:
        A('s_memrealtime s[100:101]', 's_waitcnt lgkmcnt(0)', f'v_writelane_b32 v{vDG}, s100, {k}')

_lab = [0]
def poll_check(A, rg, reissue):
    _lab[0] += 1; n = _lab[0]
    def chk():
        r = rg[0]
        if len(rg) == 4:
            A(f'v_min_u32 v{rg[0]}, v{rg[0]}, v{rg[1]}', f'v_min3_u32 v{rg[0]}, v{rg[0]}, v{rg[2]}, v{rg[3]}')
        A(f'v_cmp_eq_u32 vcc, 0, v{r}', f's_cbranch_vccz Lok{n}')
    chk()
    A(f's_mov_b32 s{sCNT}, {C.cap}', f'Lsp{n}:', reissue, 's_waitcnt vmcnt(0)')
    chk()
    A(f's_sub_u32 s{sCNT}, s{sCNT}, 1', f's_cmp_lg_u32 s{sCNT}, 0', f's_cbranch_scc1 Lsp{n}', f'Lok{n}:')

def poll_block(A, rg, txt):
    A.vmem(txt, 'poll'); A('s_waitcnt vmcnt(0)'); poll_check(A, rg, txt)

def flag_store(A, soff, srd_=sWS):
    A(f'buffer_store_dword v{vONE}, v{vZ}, {s(srd_, 4)}, {soff} offen sc1')

def roles(A):
    A('s_and_b32 s64, s2, 7', 's_lshr_b32 s65, s2, 3', 's_lshr_b32 s66, s64, 2', 's_and_b32 s67, s64, 3')
    A('s_cmp_lt_u32 s65, 12', 's_cbranch_scc0 Lrole_ffn')
    A('s_and_b32 s68, s65, 3', f's_lshl_b32 s{sMT}, s66, 2', f's_add_u32 s{sMT}, s{sMT}, s68',
      's_lshr_b32 s68, s65, 2', f's_lshr_b32 s{sROLE}, s68, 1',
      's_lshl_b32 s69, s67, 1', 's_add_u32 s69, s69, s68',
      's_cmp_eq_u32 s68, 2', f's_cselect_b32 s{sCT}, s67, s69')

def roles_ffn(A):
    A('Lrole_ffn:')
    A('s_sub_u32 s68, s65, 12', 's_mul_i32 s69, s68, 43', 's_lshr_b32 s69, s69, 7',
      's_mul_i32 s70, s69, 3', 's_sub_u32 s70, s68, s70',
      's_mul_i32 s71, s66, 7', f's_add_u32 s{sMT}, s69, s71',
      's_mul_i32 s71, s67, 3', f's_add_u32 s{sCT}, s71, s70',
      f's_cmp_lt_u32 s{sMT}, 13', 's_cbranch_scc1 Lffn',
      f's_mov_b32 s{sMT}, 6', f's_add_u32 s{sCT}, s71, 2',
      's_cmp_eq_u32 s68, 19', 's_cbranch_scc1 Lspare')

def role_of(wg):
    xcd = wg & 7; loc = wg >> 3; a_ = xcd >> 2; b = xcd & 3
    if loc < 12:
        m = 4*a_ + (loc & 3); r = loc >> 2
        return (1, m, b) if r == 2 else (0, m, 2*b + r)
    e = loc - 12
    mt = e // 3 + 7*a_; ft = 3*b + e % 3
    if mt < 13: return (2, mt, ft)
    return (3 if e == 19 else 2, 6, 3*b + 2)

def common_consts(A):
    srd(A, sWS, P_WS, WS_END); srd(A, sD, P_DBG, 256)
    A(f'v_lshlrev_b32 v{vL16}, 4, v{vL}', f'v_mov_b32 v{vONE}, 1', f'v_mov_b32 v{vZ}, {BIG:#x}',
      f'v_cmp_eq_u32 vcc, 0, v{vL}', f'v_cndmask_b32 v{vZ}, v{vZ}, 0, vcc')
    A(f's_mov_b32 s{sL}, {LOG2E}', f's_mov_b32 s{sL+1}, {LOG2E}', f's_mov_b32 s{sP0}, 0x05040100', f's_mov_b32 s{sP1}, 0x07060302')
    A('s_and_b32 s64, s2, 7', 's_lshr_b32 s65, s2, 3', 's_and_b32 s66, s65, 3', f's_lshl_b32 s{sM2}, s64, 2',
      f's_add_u32 s{sM2}, s{sM2}, s66', f's_lshr_b32 s{sNT}, s65, 2')
    A(f's_mul_i32 s64, s{sNT}, {5*68*1024}', f's_mul_i32 s65, s{sW}, {12*1024}', 's_add_u32 s64, s64, s65',
      f's_add_u32 s{sB}, s64, {WS_BT}')
    for nb in range(1, 5): A(f's_add_u32 s{sB+nb}, s{sB+nb-1}, {68*1024}')
    A(f's_mul_i32 s64, s{sM2}, {4*68*1024}', f's_add_u32 s{sA}, s64, s65')
    for tb in range(1, 4): A(f's_add_u32 s{sA+tb}, s{sA+tb-1}, {68*1024}')

def setup_x(A, ffn):
    t0, t1, t2, t3 = 2, 3, 4, 5
    nx = 5 if ffn else 8
    A(f's_mul_i32 s64, s{sMT}, {160 if ffn else 256}', f's_mul_i32 s65, s{sW}, {8*nx}', 's_add_u32 s64, s64, s65',
      's_mul_i32 s64, s64, 1280')
    A(f'v_lshrrev_b32 v{t0}, 3, v{vL}', f'v_mul_u32_u24 v{t0}, 1280, v{t0}', f'v_add_u32 v{t0}, s64, v{t0}')
    A(f'v_lshrrev_b32 v{t1}, 4, v{vL}', f'v_and_b32 v{t2}, 7, v{vL}', f'v_xor_b32 v{t1}, v{t1}, v{t2}')
    if ffn:
        A(f's_and_b32 s65, s{sW}, 1', 's_lshl_b32 s65, s65, 2', f'v_xor_b32 v{t1}, s65, v{t1}')
    A(f'v_lshl_add_u32 v{t2}, v{t1}, 4, v{t0}', f'v_xor_b32 v{t1}, 4, v{t1}', f'v_lshl_add_u32 v{t3}, v{t1}, 4, v{t0}')
    for i in range(nx):
        A(f'v_add_u32 v{vDX+i}, {i*10240 - (i % 4)*1024}, v{t2 if i % 2 == 0 else t3}')
    A(f's_mul_i32 s{sMX}, s{sW}, {nx*1024}')

def setup_w(A, ffn):
    t0, t1, t2, t3 = 2, 3, 4, 5
    if ffn:
        A(f's_mul_i32 s64, s{sW}, {16*3072}', f's_lshl_b32 s65, s{sCT}, 8', 's_add_u32 s64, s64, s65')
        A(f'v_lshrrev_b32 v{t0}, 4, v{vL}', f'v_mul_u32_u24 v{t1}, 3072, v{t0}', f'v_add_u32 v{t1}, s64, v{t1}',
          f'v_lshlrev_b32 v{t0}, 1, v{t0}', f'v_and_b32 v{t2}, 15, v{vL}', f'v_xor_b32 v{t0}, v{t0}, v{t2}',
          f'v_lshl_add_u32 v{t2}, v{t0}, 4, v{t1}', f'v_xor_b32 v{t0}, 8, v{t0}', f'v_lshl_add_u32 v{t3}, v{t0}, 4, v{t1}')
        for j in range(4):
            A(f'v_add_u32 v{vDW+j}, {j*4*3072 - j*1024}, v{t2 if j < 2 else t3}')
        A(f's_lshl_b32 s{sMW}, s{sW}, 12', f's_add_u32 s{sMW}, s{sMW}, 20480')
    else:
        A(f's_lshr_b32 s64, s{sW}, 1',
          f's_mul_i32 s65, s{sCT}, 320', 's_mul_i32 s66, s64, 160', 's_add_u32 s65, s65, s66',
          f's_mul_i32 s66, s{sCT}, 160', 's_mul_i32 s67, s64, 1280', 's_add_u32 s66, s66, s67', 's_add_u32 s66, s66, 1280',
          f's_cmp_eq_u32 s{sROLE}, 1', 's_cselect_b32 s65, s65, s66',
          f's_and_b32 s64, s{sW}, 1', 's_mul_i32 s64, s64, 320')
        for j in range(5):
            A(f'v_add_u32 v{t0}, s64, v{vL}', f'v_add_u32 v{t0}, {64*j}, v{t0}',
              f'v_mul_u32_u24 v{t1}, 6554, v{t0}', f'v_lshrrev_b32 v{t1}, 16, v{t1}',
              f'v_mul_u32_u24 v{t2}, 10, v{t1}', f'v_sub_u32 v{t0}, v{t0}, v{t2}',
              f'v_lshrrev_b32 v{t2}, 1, v{t1}', f'v_xor_b32 v{t2}, v{t2}, v{t1}', f'v_and_b32 v{t2}, 4, v{t2}',
              f'v_mul_u32_u24 v{t2}, 3, v{t2}', f'v_xor_b32 v{t1}, v{t1}, v{t2}',
              f'v_mul_u32_u24 v{t1}, 3840, v{t1}', f'v_lshl_add_u32 v{t1}, v{t0}, 4, v{t1}',
              f'v_add_u32 v{t1}, s65, v{t1}', f'v_subrev_u32 v{vDW+j}, {(j % 4)*1024}, v{t1}')
        A(f's_mul_i32 s{sMW}, s{sW}, 5120', f's_add_u32 s{sMW}, s{sMW}, 32768')

def setup_reads(A, ffn):
    t0, t1, t2, t3 = 2, 3, 4, 5
    WOFF = 20480 if ffn else 32768
    A(f'v_and_b32 v{t0}, 15, v{vL}', f'v_lshrrev_b32 v{t1}, 4, v{vL}',
      f'v_lshrrev_b32 v{t2}, 1, v{t0}', f'v_xor_b32 v{t2}, v{t2}, v{t1}',
      f'v_lshlrev_b32 v{t2}, 4, v{t2}', f'v_lshl_add_u32 v{t2}, v{t0}, 7, v{t2}')
    if not ffn: A(f'v_add_u32 v{t2}, s{sMX}, v{t2}')
    A(f'v_xor_b32 v{t3}, 64, v{t2}')
    for sl in range(3):
        A(f'v_add_u32 v{vRX+2*sl}, {sl*SLOT}, v{t2}', f'v_add_u32 v{vRX+2*sl+1}, {sl*SLOT}, v{t3}')
    A(f'v_bfe_u32 v{t0}, v{vL}, 2, 2', f'v_and_b32 v{t3}, 3, v{vL}')
    if ffn:
        A(f'v_and_b32 v{t2}, 1, v{t1}', f'v_lshl_add_u32 v{t2}, v{t2}, 2, v{t0}',
          f's_lshl_b32 s64, s{sW}, 1', f'v_xor_b32 v{t2}, s64, v{t2}',
          f'v_lshlrev_b32 v{t2}, 5, v{t2}', f'v_lshl_add_u32 v{t2}, v{t3}, 3, v{t2}',
          f'v_lshl_add_u32 v{t0}, v{t1}, 3, v{t0}', f'v_lshl_add_u32 v{t2}, v{t0}, 8, v{t2}',
          f'v_xor_b32 v{t3}, 32, v{t2}')
        for sl in range(3):
            A(f'v_add_u32 v{vRW+2*sl}, {sl*SLOT+WOFF}, v{t2}', f'v_add_u32 v{vRW+2*sl+1}, {sl*SLOT+WOFF}, v{t3}')
    else:
        A(f'v_and_b32 v{t2}, 1, v{t1}', f'v_lshl_add_u32 v{t0}, v{t2}, 2, v{t0}',
          f'v_lshrrev_b32 v{t2}, 1, v{t1}', f'v_lshl_add_u32 v{t0}, v{t2}, 4, v{t0}',
          f'v_mul_u32_u24 v{t0}, 160, v{t0}', f'v_mul_u32_u24 v{t3}, 40, v{t3}', f'v_add_u32 v{t2}, v{t0}, v{t3}')
        for sl in range(3):
            A(f'v_add_u32 v{vRW+2*sl}, {sl*SLOT+WOFF}, v{t2}')

def VM(txt, tag, pre=()):
    return lambda A: (A(*pre), A.vmem(txt, tag))

def dma_list(ffn, slab):
    sl = slab % 3
    out = []
    def grp(mbase, moff, vreg, srd_, so, n, first=()):
        for i in range(n):
            pre = list(first) if i == 0 else []
            if i % 4 == 0: pre += [f's_add_u32 m0, s{mbase}, {moff + i*1024}']
            out.append(VM(f'buffer_load_dwordx4 v{vreg+i}, {s(srd_, 4)}, s{so} offen offset:{(i % 4)*1024} {C.aux} lds', f'slab{slab}', pre))
    if ffn:
        grp(sMX, sl*SLOT, vDX, sX, sOX, 5, [f's_mov_b32 s{sOX}, {slab*128}'])
        grp(sMW, sl*SLOT, vDW, sWA, sOW, 4, [f's_mov_b32 s{sOW}, {slab*64*3072}'])
        grp(sMW, sl*SLOT + 16384, vDW, sWB, sOW, 4)
    else:
        grp(sMX, sl*SLOT, vDX, sX, sOX, 8, [f's_mov_b32 s{sOX}, {slab*128}'])
        grp(sMW, sl*SLOT, vDW, sWA, sOW, 5, [f's_mov_b32 s{sOW}, {slab*64*3840}'])
    return out

def frag_regs(ffn, st):
    base = 56*st
    if ffn: return [base + 4*i for i in range(10)], [base + 40 + 4*i for i in range(4)]
    return [base + 4*i for i in range(4)], [base + 16 + 4*i for i in range(10)]

def read_list(ffn, step):
    slab, s_ = step // 2, step % 2
    sl = slab % 3
    xr, wr = frag_regs(ffn, step % 2)
    X = [f'ds_read_b128 {a(r, 4)}, v{vRX+2*sl+s_} offset:{tb*2048}' for tb, r in enumerate(xr)]
    W = []
    for b, r in enumerate(wr):
        for j in range(2):
            if ffn: W.append(f'ds_read_b64_tr_b16 {a(r+2*j, 2)}, v{vRW+2*sl+(b & 1)} offset:{(b >> 1)*16384 + (32*s_+4*j)*256}')
            else: W.append(f'ds_read_b64_tr_b16 {a(r+2*j, 2)}, v{vRW+2*sl} offset:{(b // 5)*10240 + (32*s_+8*j)*160 + 8*(b % 5)}')
    return (W + X) if ffn else (X + W)

def acc(ffn, tb, cb): return ACC + 4*(tb*4 + cb) if ffn else ACC + 4*(tb*10 + cb)
def MF(d, A_, B_, c): return f'v_mfma_f32_16x16x32_bf16 {d}, {A_}, {B_}, {c}'

def mfma_list(ffn, step):
    xr, wr = frag_regs(ffn, step % 2)
    if ffn: order = [(tb, cb) for tb in range(10) for cb in (range(4) if tb % 2 == 0 else range(3, -1, -1))]
    else: order = [(tb, cb) for cb in range(10) for tb in (range(4) if cb % 2 == 0 else range(3, -1, -1))]
    return [MF(v(acc(ffn, tb, cb), 4), a(wr[cb], 4), a(xr[tb], 4), 0 if step == 0 else v(acc(ffn, tb, cb), 4)) for tb, cb in order]

def mainloop(A, ffn, head, extra):
    nx = 5 if ffn else 8
    d0 = dma_list(ffn, 0)
    setup_x(A, ffn)
    A('s_waitcnt lgkmcnt(0)')
    srd(A, sX, P_X, 2048*1280)
    for f in d0[:nx]: f(A)
    setup_w(A, ffn)
    if ffn: srd(A, sWA, P_W1, 640*3072); srd(A, sWB, P_W3, 640*3072)
    else: srd(A, sWA, P_WQKV, 640*3840)
    for f in d0[nx:]: f(A)
    setup_reads(A, ffn)
    for slab in range(1, C.pre):
        for f in dma_list(ffn, slab): f(A)
    common_consts(A)
    stamp(A, 1)
    A.wait_vm('slab0'); A('s_barrier')
    stamp(A, 2)
    A(*read_list(ffn, 0)); A('s_waitcnt lgkmcnt(0)')
    pend = [f for slab in range(C.pre, 3) for f in dma_list(ffn, slab)]
    for step in range(20):
        slab = step // 2
        if step % 2 == 1:
            if step < 19: A.wait_vm(f'slab{slab+1}')
            A('s_barrier')
            if slab + 3 < 10: pend = dma_list(ffn, slab + 3)
        if step in head: head[step](A)
        rd = read_list(ffn, step + 1) if step < 19 else []
        if step % 2 == 1: dm, pend = pend[:C.split], pend[C.split:]
        else: dm, pend = pend, []
        ev = spread(rd, 0, C.rd_end) + spread(extra.get(step, []), 0.2, 37) + spread(dm, 2, 39.9)
        A.weave(mfma_list(ffn, step), ev)
        if step < 19: A('s_waitcnt lgkmcnt(0)')
    stamp(A, 3)

def breg(i): return 112 + 4*i if i < 21 else (4*(i - 21) if i < 49 else 196 + 4*(i - 49))
def bload(i, reg=None, step=None):
    u, nb = divmod(i, 5)
    if step is not None: u = step
    r = breg(i) if reg is None else reg
    return VM(f'buffer_load_dwordx4 {a(r, 4)}, v{vL16}, {s(sWS, 4)}, s64 offen offset:{(u % 4)*1024} sc1', 'B',
              [f's_add_u32 s64, s{sB+nb}, {(u // 4)*4096}'])

Z_TXT = lambda: f'buffer_load_dword v89, v{vZ}, {s(sD, 4)}, 0 offen sc1'
def z_issue(): return [lambda A: (A(f'v_mov_b32 v4, 0'), A.vmem(f'buffer_load_dword v89, v4, {s(sD, 4)}, 0 offen sc1', 'z'))]
def z_check(A):
    A('v_mov_b32 v4, 0')
    poll_check(A, [89], f'buffer_load_dword v89, v4, {s(sD, 4)}, 0 offen sc1')
E_TXT = f'buffer_load_dwordx4 v[86:89], v90, {s(sWS, 4)}, s{sJ0} offen sc1'
def e_issue():
    return [f'v_min_u32 v90, 39, v{vL}', 'v_lshlrev_b32 v90, 4, v90', f's_mov_b32 s{sJ0}, {F_E}', VM(E_TXT, 'e')]
def e_check(A): A.wait_vm('e'); poll_check(A, [86, 87, 88, 89], E_TXT)
def covered(tags, by):
    def f(A):
        for t in tags: assert A.vm_after(t) > A.vm_after(by), (t, by)
    return f

def wq_dma():
    def f(A):
        srd(A, sT, P_WPHI, 32*800)
        A('s_lshr_b32 s64, s2, 3', 's_mul_i32 s64, s64, 800', 's_mov_b32 s66, m0', f's_mov_b32 m0, {SP}', 's_mov_b32 exec_hi, 0x3ffff')
        A.vmem(f'buffer_load_dwordx4 v{vL16}, {s(sT, 4)}, s64 offen lds', 'wq')
        A('s_mov_b32 exec_hi, -1', 's_mov_b32 m0, s66')
    return [f]
def wq_build(t):
    ad = t + 8; mk = t + 9
    pre = [f'v_bfe_u32 v2, v{vL}, 2, 2', f'v_mul_u32_u24 v2, 10, v2', f'v_lshrrev_b32 v3, 4, v{vL}', f'v_mul_u32_u24 v4, 320, v3',
           f'v_add3_u32 v2, v2, v4, s64', f'v_and_b32 v4, 3, v{vL}', f'v_lshl_add_u32 v{ad}, v4, 1, v2', f'v_add_u32 v{mk}, 8, v2']
    pre = [f's_mov_b32 s64, {SP}'] + pre
    r0 = [f'ds_read_u16 v{t+e}, v{ad} offset:{40*e}' for e in range(8)]
    p0 = [f'v_lshl_or_b32 v{vWQ+j}, v{t+2*j+1}, 16, v{t+2*j}' for j in range(4)]
    r1 = [f'ds_read_u16 v{t+e}, v{mk} offset:{40*e}' for e in range(8)]
    p1 = [f'v_lshl_or_b32 v{vWQ+4+j}, v{t+2*j+1}, 16, v{t+2*j}' for j in range(4)]
    msk = [f'v_cmp_gt_u32 vcc, 48, v{vL}'] + [f'v_cndmask_b32 v{vWQ+j}, 0, v{vWQ+j}, vcc' for j in (0, 1, 4, 5)] + \
          [f'v_cmp_gt_u32 vcc, 32, v{vL}'] + [f'v_cndmask_b32 v{vWQ+j}, 0, v{vWQ+j}, vcc' for j in (2, 3, 6, 7)]
    return [pre] + r0, p0 + r1, p1 + [msk]

RTI, RTO, STI = 34, 50, 66
def retile_addr():
    return [f'v_and_b32 v2, 15, v{vL}', f'v_lshrrev_b32 v3, 4, v{vL}', f'v_mul_u32_u24 v90, 5120, v3', 'v_lshl_add_u32 v90, v2, 3, v90',
            'v_lshrrev_b32 v4, 2, v2', f'v_mul_u32_u24 v91, {68*1024}, v4', 'v_and_b32 v2, 3, v2', 'v_lshl_add_u32 v2, v3, 4, v2',
            'v_lshl_add_u32 v91, v2, 4, v91']
def retile_scalar(A):
    A(f's_mul_i32 s64, s{sY}, 6554', 's_lshr_b32 s64, s64, 16', 's_mul_i32 s65, s64, 10', f's_sub_u32 s65, s{sY}, s65',
      f's_mul_i32 s{sJ1}, s65, {4*68}', f's_add_u32 s{sJ1}, s{sJ1}, s64', f's_lshl_b32 s{sJ1}, s{sJ1}, 10', f's_add_u32 s{sJ1}, s{sJ1}, {WS_BT}',
      's_cmp_lt_u32 s64, 48', f's_cselect_b32 s{sT}, s{P_W2}, s{P_WO}', f's_cselect_b32 s{sT+1}, s{P_W2+1}, s{P_WO+1}',
      f's_mov_b32 s{sT+2}, {640*1280}', f's_cselect_b32 s{sT+2}, {1536*1280}, s{sT+2}', 's_cselect_b32 s66, 0, 48', f's_mov_b32 s{sT+3}, 0x20000',
      's_sub_u32 s64, s64, s66', f's_mul_i32 s64, s64, {32*1280}', 's_lshl_b32 s65, s65, 7', f's_add_u32 s{sJ0}, s64, s65')
def retile_loads():
    return [VM(f'buffer_load_dwordx2 {v(RTI+2*e, 2)}, v90, {s(sT, 4)}, s{sJ0} offen offset:{(e & 3)*1280}', 'rt',
               [f's_add_u32 s{sJ0}, s{sJ0}, 20480'] if e == 4 else []) for e in range(8)]
def retile_work():
    out = []
    for c in range(4):
        for e2 in range(4):
            out.append(f'v_perm_b32 v{RTO+4*c+e2}, v{RTI+4*e2+2+(c >> 1)}, v{RTI+4*e2+(c >> 1)}, s{sP0 + (c & 1)}')
        out.append(VM(f'buffer_store_dwordx4 {v(RTO+4*c, 4)}, v91, {s(sWS, 4)}, s{sJ1} offen offset:{64*c} sc1', 'st'))
    return out

def stats_addr():
    return [f'v_and_b32 v2, 15, v{vL}', f'v_lshrrev_b32 v3, 4, v{vL}', 'v_mul_u32_u24 v92, 1280, v3', 'v_lshl_add_u32 v92, v2, 4, v92',
            f's_mul_i32 s{sJ2}, s{sY}, 5120']
def stats_loads():
    return [VM(f'buffer_load_dwordx4 {v(STI+4*u, 4)}, v92, {s(sX, 4)}, s{sJ2} offen offset:{256*u}', 'sx') for u in range(5)]
def stats_work():
    S, Q, t0, t1 = 86, 87, 88, 89
    o = []
    for r in range(20):
        o += [f'v_lshlrev_b32 v{t0}, 16, v{STI+r}', f'v_and_b32 v{t1}, 0xffff0000, v{STI+r}']
        if r == 0: o += [f'v_add_f32 v{S}, v{t0}, v{t1}', f'v_mul_f32 v{Q}, v{t0}, v{t0}', f'v_fmac_f32 v{Q}, v{t1}, v{t1}']
        else: o += [f'v_add_f32 v{S}, v{S}, v{t0}', f'v_fmac_f32 v{Q}, v{t0}, v{t0}', f'v_add_f32 v{S}, v{S}, v{t1}', f'v_fmac_f32 v{Q}, v{t1}, v{t1}']
    for k in (8, 4, 2, 1):
        o += [f'v_add_f32_dpp v{S}, v{S}, v{S} row_ror:{k} row_mask:0xf bank_mask:0xf',
              f'v_add_f32_dpp v{Q}, v{Q}, v{Q} row_ror:{k} row_mask:0xf bank_mask:0xf']
    R = STI
    o += [f'v_mul_f32 v{R+1}, 0xbacccccd, v{S}',
          f'v_mul_f32 v{Q}, 0x3acccccd, v{Q}', f'v_fma_f32 v{Q}, -v{R+1}, v{R+1}, v{Q}', f'v_max_f32 v{Q}, 0, v{Q}',
          f'v_add_f32 v{R+3}, 0x3727c5ac, v{Q}', f'v_rsq_f32 v{R}, v{R+3}',
          f'v_and_b32 v2, 15, v{vL}', f'v_and_b32 v92, 48, v{vL}', 'v_cmp_eq_u32 vcc, 0, v2', f'v_mov_b32 v3, {BIG:#x}',
          f'v_mul_f32 v{R+2}, 0xbfb8aa3b, v{R}', 'v_cndmask_b32 v92, v3, v92, vcc',
          [f's_lshl_b32 s{sJ2}, s{sY}, 6', f's_add_u32 s{sJ2}, s{sJ2}, {WS_ST}', f's_cmp_lt_u32 s{sY}, 512', f's_cselect_b32 s{sJ2}, s{sJ2}, {WS_END}'],
          VM(f'buffer_store_dwordx4 {v(R, 4)}, v92, {s(sWS, 4)}, s{sJ2} offen sc1', 'st')]
    return o

CSA = 112
def colsum_scalar(A):
    A(f's_lshr_b32 s64, s{sY}, 3', f's_and_b32 s65, s{sY}, 7',
      's_mul_i32 s75, s65, 19968', 's_lshl_b32 s66, s64, 8', 's_add_u32 s75, s75, s66', f's_add_u32 s75, s75, {WS_CS}',
      's_cmp_lt_u32 s64, 54', f's_cselect_b32 s{sT2}, s{P_W1}, s{P_W3}', f's_cselect_b32 s{sT2+1}, s{P_W1+1}, s{P_W3+1}', 's_cselect_b32 s66, 30, 54',
      's_cmp_lt_u32 s64, 30', f's_cselect_b32 s{sT2}, s{P_WQKV}, s{sT2}', f's_cselect_b32 s{sT2+1}, s{P_WQKV+1}, s{sT2+1}',
      's_cselect_b32 s66, 0, s66', 's_mov_b32 s72, 3072', 's_cselect_b32 s72, 3840, s72', f's_mov_b32 s{sT2+3}, 0x20000', f's_mul_i32 s{sT2+2}, s72, 640',
      's_sub_u32 s64, s64, s66', 's_lshl_b32 s64, s64, 7', 's_mul_i32 s65, s65, 80', 's_mul_i32 s65, s65, s72', 's_add_u32 s73, s64, s65',
      's_lshl_b32 s74, s72, 3')
def colsum_addr():
    return [f'v_lshrrev_b32 v2, 3, v{vL}', 'v_mul_u32_u24 v93, s72, v2', f'v_and_b32 v2, 7, v{vL}', 'v_lshl_add_u32 v93, v2, 4, v93',
            f'v_lshrrev_b32 v3, 4, v{vL}', 'v_lshlrev_b32 v94, 5, v2', 'v_lshl_add_u32 v94, v3, 3, v94']
def colsum_loads():
    return [VM(f'buffer_load_dwordx4 {a(CSA+4*u, 4)}, v93, {s(sT2, 4)}, s73 offen', 'cs', ['s_add_u32 s73, s73, s74'] if u else []) for u in range(10)]
def colsum_work():
    Cc = 50; o = []
    for u in range(10):
        for j in range(4):
            t = 34 + 3*(j & 1)
            o.append(f'v_accvgpr_read_b32 v{t}, a{CSA+4*u+j}')
            if u == 0: o += [f'v_lshlrev_b32 v{Cc+2*j}, 16, v{t}', f'v_and_b32 v{Cc+2*j+1}, 0xffff0000, v{t}']
            else: o += [f'v_lshlrev_b32 v{t+1}, 16, v{t}', f'v_and_b32 v{t+2}, 0xffff0000, v{t}',
                        f'v_add_f32 v{Cc+2*j}, v{Cc+2*j}, v{t+1}', f'v_add_f32 v{Cc+2*j+1}, v{Cc+2*j+1}, v{t+2}']
    o += [f'v_permlane32_swap_b32 v{Cc+j}, v{Cc+j+4}' for j in range(4)] + [f'v_add_f32 v{Cc+j}, v{Cc+j}, v{Cc+j+4}' for j in range(4)]
    o += [f'v_permlane16_swap_b32 v{Cc+j}, v{Cc+j+2}' for j in range(2)] + [f'v_add_f32 v{Cc+j}, v{Cc+j}, v{Cc+j+2}' for j in range(2)]
    o += [f'v_add_f32_dpp v{Cc+j}, v{Cc+j}, v{Cc+j} row_ror:8 row_mask:0xf bank_mask:0xf' for j in range(2)]
    o += [VM(f'buffer_store_dwordx2 {v(Cc, 2)}, v94, {s(sWS, 4)}, s75 offen sc1', 'st')]
    return o

def ffn_role(A):
    A('Lffn:'); A.vm = []
    ST, CS = 34, 74
    head, extra = {}, {}
    def h1(A):
        A(f's_mul_i32 s{sY}, s{sMT}, 12', f's_add_u32 s{sY}, s{sY}, s{sCT}', f's_lshl_b32 s{sY}, s{sY}, 2', f's_add_u32 s{sY}, s{sY}, s{sW}')
    extra[0] = [h1, retile_scalar] + retile_addr() + stats_addr()
    extra[1] = z_issue() + retile_loads()
    extra[2] = stats_loads() + [colsum_scalar] + colsum_addr()
    cl_ = colsum_loads()
    extra[3] = cl_[:5]; extra[4] = cl_[5:]
    head[5] = lambda A: (covered(['z', 'rt', 'sx'], 'slab3')(A), z_check(A))
    head[7] = covered(['cs'], 'slab4')
    head[15] = covered(['wq'], 'slab8')
    work = retile_work() + stats_work()
    cw = colsum_work()
    n = (len(work) + len(cw)) // 6 + 1
    assert 2*n <= len(work)
    extra[5] = work[:n]; extra[6] = work[n:2*n]
    rest = work[2*n:] + cw
    for k, st in enumerate((7, 8, 9, 10)):
        m = (len(rest) + 3) // 4
        extra[st] = rest[k*m:(k+1)*m]
    extra[11] = wq_dma()
    def h13(A):
        assert A.vm_after('st') > A.vm_after('slab7')
        A(f's_cmp_eq_u32 s{sW}, 0', 's_cbranch_scc0 Lffn_noE', f's_and_b32 s64, s{sY}, -4', f's_add_u32 s64, s64, {F_E}')
        flag_store(A, 's64'); A('Lffn_noE:')
    head[13] = h13
    w0, w1, w2 = wq_build(34)
    extra[15] = e_issue() + w0; extra[16] = w1
    head[17] = e_check
    ld = [[f'v_and_b32 v2, 31, v{vL}', f'v_lshrrev_b32 v3, 5, v{vL}', 'v_mul_u32_u24 v3, 6144, v3', 'v_lshl_add_u32 v5, v2, 2, v3',
           f's_lshl_b32 s65, s{sCT}, 9', f's_lshl_b32 s66, s{sW}, 7', 's_add_u32 s65, s65, s66', f's_add_u32 s65, s65, {WS_CS + 1920*4}']]
    ct = [90, 91, 92, 93, 94, 2, 3, 4]
    ld += [VM(f'buffer_load_dword v{ct[p]}, v5, {s(sWS, 4)}, s65 offen sc1', 'csl', ['s_add_u32 s65, s65, 19968'] if p else []) for p in range(8)]
    ld += [[f'v_and_b32 v20, 15, v{vL}', 'v_lshlrev_b32 v20, 4, v20', f's_mul_i32 s65, s{sMT}, 2560', f's_add_u32 s65, s65, {WS_ST}']]
    ld += [VM(f'buffer_load_dwordx3 {v(ST+4*tb, 3)}, v20, {s(sWS, 4)}, s65 offen offset:{256*tb+4} sc1', 'stl') for tb in range(10)]
    extra[17] = w2 + ld
    b1 = [bload(i) for i in list(range(21)) + list(range(49, 60))]
    extra[18] = b1[:16]
    csw = [lambda A: A.wait_vm('csl')] + [f'v_add_f32 v90, v90, v{ct[p]}' for p in range(1, 8)]
    csw += [[f's_lshl_b32 s65, s{sW}, 10', f's_add_u32 s65, s65, {CSS}', f'v_lshl_add_u32 v2, v{vL}, 2, s65', f'v_and_b32 v3, 48, v{vL}',
             'v_add_u32 v3, s65, v3', 'ds_write_b32 v2, v90', 's_waitcnt lgkmcnt(0)']]
    csw += [f'ds_read_b128 {v(CS+4*b, 4)}, v3 offset:{64*b}' for b in range(4)]
    extra[19] = csw + b1[16:]
    mainloop(A, True, head, extra)
    A(f's_mul_i32 s65, s{sMT}, {10*68}', f's_lshl_b32 s66, s{sCT}, 2', 's_add_u32 s65, s65, s66', f's_add_u32 s65, s65, s{sW}',
      's_lshl_b32 s65, s65, 10')
    A.wait_vm('stl'); A('s_waitcnt lgkmcnt(0)')
    b2 = [bload(i) for i in range(21, 49)]
    T = 22
    for tb in range(10):
        if tb == 8: A(f's_cmp_eq_u32 s{sMT}, 12', 's_cbranch_scc1 Lffn_skip')
        g, u, st = acc(True, tb, 0), acc(True, tb, 2), ST + 4*tb
        O = 30 if tb % 2 == 0 else 16
        o = []
        o += [f'v_pk_fma_f32 {v(g+2*j, 2)}, {v(CS+2*j, 2)}, {v(st, 2)}, {v(g+2*j, 2)} op_sel_hi:[1,0,1]' for j in range(4)]
        o += [f'v_pk_fma_f32 {v(u+2*j, 2)}, {v(CS+8+2*j, 2)}, {v(st, 2)}, {v(u+2*j, 2)} op_sel_hi:[1,0,1]' for j in range(4)]
        o += [f'v_pk_mul_f32 {v(T+2*j, 2)}, {v(g+2*j, 2)}, {v(st, 2)} op_sel:[0,1] op_sel_hi:[1,1]' for j in range(4)]
        o += [f'v_exp_f32 v{T+j}, v{T+j}' for j in range(8)]
        o += [f'v_pk_mul_f32 {v(g+2*j, 2)}, {v(g+2*j, 2)}, {v(u+2*j, 2)}' for j in range(4)]
        o += [f'v_pk_fma_f32 {v(T+2*j, 2)}, {v(T+2*j, 2)}, {v(st+2, 2)}, {v(st+2, 2)} op_sel_hi:[1,0,0]' for j in range(4)]
        o += [f'v_rcp_f32 v{T+j}, v{T+j}' for j in range(8)]
        o += [f'v_pk_mul_f32 {v(g+2*j, 2)}, {v(g+2*j, 2)}, {v(T+2*j, 2)}' for j in range(4)]
        o += [f'v_cvt_pk_bf16_f32 v{O+j}, v{g+2*j}, v{g+2*j+1}' for j in range(4)]
        bl = b2[4*tb:4*tb+4] if tb < 7 else []
        A.weave(o, spread(bl, 2, 40))
        A.vmem(f'buffer_store_dwordx4 {v(O, 4)}, v{vL16}, {s(sWS, 4)}, s65 offen sc1', 'h')
        A(f's_add_u32 s65, s65, {68*1024}')
    A('Lffn_skip:')
    A(f's_lshl_b32 s65, s{sMT}, 8', f's_lshl_b32 s66, s{sCT}, 4', 's_add_u32 s65, s65, s66', f's_lshl_b32 s66, s{sW}, 2', 's_add_u32 s65, s65, s66',
      f's_add_u32 s65, s65, {F_H}')
    stamp(A, 4)
    A('s_waitcnt vmcnt(0)'); flag_store(A, 's65')
    A('s_branch Lcommon')

WPA = 196
def qkv_role(A):
    A.vm = []
    ST, CS = 34, 42
    head, extra = {}, {}
    def wk_dma(A):
        srd(A, sT, P_WPHI, 32*800)
        A(f's_lshl_b32 s64, s{sCT}, 2', f's_add_u32 s64, s64, s{sW}', 's_mul_i32 s64, s64, 800',
          f's_mul_i32 s65, s{sW}, 800', 's_mov_b32 s66, m0', f's_add_u32 m0, s65, {SP}',
          'v_mov_b32 v34, 0', 'v_mov_b32 v35, 0', 'v_mov_b32 v36, 0', 'v_mov_b32 v37, 0', f'v_add_u32 v2, {SP+3200}, v{vL16}',
          's_mov_b32 exec_hi, 0x3ffff')
        A.vmem(f'buffer_load_dwordx4 v{vL16}, {s(sT, 4)}, s64 offen lds', 'wk')
        A('ds_write_b128 v2, v[34:37]', 's_mov_b32 exec_hi, -1', 's_mov_b32 m0, s66')
    extra[1] = z_issue() + [wk_dma]
    head[5] = lambda A: (covered(['z', 'wk'], 'slab3')(A), z_check(A))
    head[15] = covered(['wq'], 'slab8')
    wk = [[f'v_lshrrev_b32 v2, 4, v{vL}', f'v_and_b32 v3, 3, v{vL}', 'v_cmp_eq_u32 vcc, v2, v3', 'v_mul_u32_u24 v2, 800, v2',
           'v_mov_b32 v3, 3200', f'v_bfe_u32 v4, v{vL}, 2, 2', 'v_cndmask_b32 v2, v3, v2, vcc', 'v_mul_u32_u24 v4, 40, v4',
           f's_mov_b32 s64, {SP}', 'v_add3_u32 v34, v2, v4, s64']]
    for b in range(5):
        for sg in range(3):
            for j in range(2):
                r = WPA + 4*(3*b + sg) + 2*j
                if sg == 2 and j == 1: wk += [f'v_accvgpr_write_b32 a{r}, 0', f'v_accvgpr_write_b32 a{r+1}, 0']
                else: wk.append(f'ds_read_b64_tr_b16 {a(r, 2)}, v34 offset:{(8*sg + 4*j)*40 + 8*b}')
    extra[5] = wk[:18]; extra[6] = wk[18:]
    extra[11] = wq_dma()
    w0, w1, w2 = wq_build(34)
    extra[15] = e_issue() + w0; extra[16] = w1
    head[17] = e_check
    ld = [[f'v_min_u32 v2, 39, v{vL}', 'v_cmp_lt_u32 vcc, 19, v2', 'v_lshlrev_b32 v2, 4, v2',
           f's_cmp_eq_u32 s{sROLE}, 1', 's_cselect_b32 s65, 0, 2240', 's_mov_b32 s66, 320', 's_cselect_b32 s66, 640, s66', 's_cselect_b32 s67, 0, 2560',
           'v_add_u32 v3, s65, v2', f's_mul_i32 s66, s66, s{sCT}', 'v_cndmask_b32 v5, v2, v3, vcc', 's_add_u32 s65, s66, s67',
           f's_add_u32 s65, s65, {WS_CS}']]
    ld += [VM(f'buffer_load_dwordx4 {v(44+4*p, 4)}, v5, {s(sWS, 4)}, s65 offen sc1', 'csl', ['s_add_u32 s65, s65, 19968'] if p else []) for p in range(8)]
    ld += [[f'v_and_b32 v20, 15, v{vL}', 'v_lshlrev_b32 v20, 4, v20', f's_lshl_b32 s65, s{sMT}, 12', f's_lshl_b32 s66, s{sW}, 10',
            's_add_u32 s65, s65, s66', f's_add_u32 s65, s65, {WS_ST}']]
    ld += [VM(f'buffer_load_dwordx2 {v(ST+2*tb, 2)}, v20, {s(sWS, 4)}, s65 offen offset:{256*tb} sc1', 'stl') for tb in range(4)]
    b1 = [bload(i) for i in range(21)]
    extra[17] = w2 + ld + b1[:3]
    extra[18] = b1[3:15]
    csw = [lambda A: A.wait_vm('csl')]
    csw += [f'v_add_f32 v{82+j}, v{44+j}, v{48+j}' for j in range(4)]
    csw += [f'v_add_f32 v{82+j}, v{82+j}, v{44+4*p+j}' for p in range(2, 8) for j in range(4)]
    csw += [[f's_lshl_b32 s65, s{sW}, 10', f's_add_u32 s65, s65, {CSS}', f'v_add_u32 v2, s65, v{vL16}', f'v_lshrrev_b32 v3, 4, v{vL}',
             'v_mul_u32_u24 v3, 80, v3', 'v_add_u32 v3, s65, v3', 'ds_write_b128 v2, v[82:85]', 's_waitcnt lgkmcnt(0)']]
    csw += [f'ds_read_b128 {v(CS+4*b, 4)}, v3 offset:{(b // 5)*320 + (b % 5)*16}' for b in range(10)]
    extra[19] = csw + b1[15:]
    mainloop(A, False, head, extra)
    A.wait_vm('stl'); A('s_waitcnt lgkmcnt(0)')
    vm0 = list(A.vm)
    A(f's_cmp_eq_u32 s{sROLE}, 1', 's_cbranch_scc1 Lq')
    def conv(tb, grp, O):
        o = []; st = ST + 2*tb
        rr = [(acc(False, tb, 5*grp) + 2*j, CS + 20*grp + 2*j) for j in range(10)]
        o += [f'v_pk_fma_f32 {v(r, 2)}, {v(c, 2)}, {v(st, 2)}, {v(r, 2)} op_sel:[0,1,0] op_sel_hi:[1,1,1]' for r, c in rr]
        o += [f'v_pk_mul_f32 {v(r, 2)}, {v(r, 2)}, {v(st, 2)} op_sel_hi:[1,0]' for r, c in rr]
        o += [f'v_cvt_pk_bf16_f32 v{O+j}, v{r}, v{r+1}' for j, (r, c) in enumerate(rr)]
        return o
    b2 = [bload(i) for i in range(21, 49)]; b3 = [bload(i) for i in range(49, 60)]
    KB, VB = 22, 82
    A(f'v_mov_b32 v{KB+10}, 0', f'v_mov_b32 v{KB+11}, 0', f'v_mov_b32 v{VB+10}, 0x3f80', f'v_mov_b32 v{VB+11}, 0',
      f'v_and_b32 v2, 15, v{vL}', f'v_mul_u32_u24 v2, {IMG}, v2', f'v_lshrrev_b32 v3, 4, v{vL}', 'v_lshl_add_u32 v2, v3, 7, v2',
      f's_mul_i32 s65, s{sW}, {64*IMG}', 'v_add_u32 v20, s65, v2')
    for tb in range(4):
        P = acc(False, tb, 0); N = acc(False, tb, 5)
        A(*conv(tb, 0, KB))
        mf = [MF(v(P+4*b, 4), a(WPA + 4*(3*b+sg), 4), v(KB+4*sg, 4), 0 if sg == 0 else v(P+4*b, 4)) for sg in range(3) for b in range(5)]
        A(*mf)
        A(*conv(tb, 1, VB))
        A(*[f'ds_write_b128 v20, {v(VB+4*j, 4)} offset:{tb*16*IMG + 80 + 16*j}' for j in range(3)])
        mx, mn = 2, 3
        o = [f'v_max3_f32 v{mx}, v{P}, v{P+1}, v{P+2}', f'v_min3_f32 v{mn}, v{P}, v{P+1}, v{P+2}']
        for j in range(3, 19, 2): o += [f'v_max3_f32 v{mx}, v{mx}, v{P+j}, v{P+j+1}', f'v_min3_f32 v{mn}, v{mn}, v{P+j}, v{P+j+1}']
        o += [f'v_max_f32 v{mx}, v{mx}, v{P+19}', f'v_min_f32 v{mn}, v{mn}, v{P+19}',
              f'v_mul_f32 v{mx}, 0xbfb8aa3b, v{mx}', f'v_mul_f32 v{mn}, {LOG2E}, v{mn}']
        o += [f'v_pk_fma_f32 {v(N+2*j, 2)}, {v(P+2*j, 2)}, {s(sL, 2)}, {v(2, 2)} op_sel:[0,0,1] op_sel_hi:[1,1,1] neg_lo:[0,1,0] neg_hi:[0,1,0]' for j in range(10)]
        o += [f'v_pk_fma_f32 {v(P+2*j, 2)}, {v(P+2*j, 2)}, {s(sL, 2)}, {v(2, 2)} op_sel_hi:[1,1,0]' for j in range(10)]
        o += [f'v_exp_f32 v{P+j}, v{P+j}' for j in range(20)] + [f'v_exp_f32 v{N+j}, v{N+j}' for j in range(20)]
        o += [f'v_pk_add_f32 v[2:3], {v(P, 2)}, {v(P+2, 2)}', f'v_pk_add_f32 v[4:5], {v(N, 2)}, {v(N+2, 2)}']
        for j in range(2, 10): o += [f'v_pk_add_f32 v[2:3], v[2:3], {v(P+2*j, 2)}', f'v_pk_add_f32 v[4:5], v[4:5], {v(N+2*j, 2)}']
        o += ['v_add_f32 v2, v2, v3', 'v_add_f32 v4, v4, v5', 'v_rcp_f32 v2, v2', 'v_rcp_f32 v3, v4']
        o += [f'v_pk_mul_f32 {v(P+2*j, 2)}, {v(P+2*j, 2)}, v[2:3] op_sel_hi:[1,0]' for j in range(10)]
        o += [f'v_pk_mul_f32 {v(N+2*j, 2)}, {v(N+2*j, 2)}, v[2:3] op_sel:[0,1] op_sel_hi:[1,1]' for j in range(10)]
        seq = [r for q in range(4) for r in [P+5*q+j for j in range(5)] + [N+5*q+j for j in range(5)]]
        OUT = [16, 22, 26, 82, 86]
        for pc in range(5):
            o += [f'v_cvt_pk_bf16_f32 v{OUT[pc]+j}, v{seq[8*pc+2*j]}, v{seq[8*pc+2*j+1]}' for j in range(4)]
            o += [f'ds_write_b128 v20, {v(OUT[pc], 4)} offset:{tb*16*IMG + 16*pc}']
        bl = b2[7*tb:7*tb+7]
        A.weave(o, spread(bl, 2, 150))
    stamp(A, 4)
    A(f'v_lshrrev_b32 v2, 4, v{vL}', f'v_bfe_u32 v3, v{vL}, 2, 2', 'v_and_b32 v4, 1, v2', 'v_lshl_add_u32 v3, v4, 2, v3',
      'v_lshrrev_b32 v4, 1, v2', 'v_lshl_add_u32 v3, v3, 1, v4', f'v_mul_u32_u24 v3, {IMG}, v3', f'v_and_b32 v4, 3, v{vL}',
      'v_lshl_add_u32 v3, v4, 3, v3', f's_lshl_b32 s65, s{sW}, 7', 'v_add_u32 v16, s65, v3', f'v_add_u32 v17, {128*IMG}, v16')
    A(f'v_and_b32 v3, 15, v{vL}', 'v_mul_u32_u24 v4, 21, v2', 'v_add_lshl_u32 v22, v4, v3, 4', 'v_add_u32 v23, 256, v22', f'v_mov_b32 v5, {BIG:#x}',
      'v_cmp_gt_u32 vcc, 5, v3', 'v_cndmask_b32 v23, v5, v23, vcc', f'v_cmp_gt_u32 vcc, 32, v{vL}',
      'v_cndmask_b32 v24, v5, v22, vcc', 'v_cndmask_b32 v25, v5, v23, vcc',
      f's_lshl_b32 s65, s{sCT}, 2', f's_add_u32 s65, s65, s{sW}', 's_lshl_b32 s65, s65, 3', f's_add_u32 s65, s65, s{sMT}',
      f's_mul_i32 s66, s65, {KVP}', f's_add_u32 s66, s66, {WS_KV}', 's_lshl_b32 s65, s65, 2', f's_add_u32 s65, s65, {F_KV}')
    A('s_waitcnt lgkmcnt(0)', 's_barrier')
    FR, KA = 96, 140
    def kvr(sg):
        return [f'ds_read_b64_tr_b16 {v(FR + 20*(sg & 1) + 4*f + 2*j, 2)}, v{16 + (sg >> 2)} offset:{(32*(sg & 3) + 16*j)*IMG + cb}'
                for f, cb in enumerate((0, 32, 64, 80, 112)) for j in range(2)]
    A(*kvr(0))
    for sg in range(8):
        A('s_waitcnt lgkmcnt(0)')
        if sg < 7: A(*kvr(sg + 1))
        F = FR + 20*(sg & 1)
        A(*[MF(v(KA + 4*(2*b+db), 4), v(F+4*b, 4), v(F+12+4*db, 4), 0 if sg == 0 else v(KA + 4*(2*b+db), 4)) for b in range(3) for db in range(2)])
    for b in range(3):
        for db in range(2):
            A.vmem(f'buffer_store_dwordx4 {v(KA + 4*(2*b+db), 4)}, v{22 + db + (2 if b == 2 else 0)}, {s(sWS, 4)}, s66 offen offset:{1344*b} sc1', 'kv')
    for f in b3: f(A)
    A.wait_vm('kv'); flag_store(A, 's65')
    A('s_branch Lcommon')
    A('Lq:'); A.vm = vm0
    A(f'v_and_b32 v2, 15, v{vL}', f'v_lshrrev_b32 v3, 4, v{vL}', 'v_mul_u32_u24 v3, 12288, v3', 'v_lshl_add_u32 v20, v2, 4, v3',
      f's_lshl_b32 s65, s{sMT}, 2', f's_add_u32 s65, s65, s{sCT}', f's_mul_i32 s66, s65, {8*12288}', f's_lshl_b32 s67, s{sW}, 10',
      's_add_u32 s66, s66, s67', f's_add_u32 s66, s66, {WS_Q}')
    for k in range(6): A(f's_add_u32 s{68+k}, s66, {(k // 3)*49152 + (k % 3)*4096}')
    A('s_lshl_b32 s65, s65, 2', f's_add_u32 s65, s65, s{sW}', 's_lshl_b32 s65, s65, 2', f's_add_u32 s65, s65, {F_Q}')
    A(*[f'v_mov_b32 v{r}, 0' for r in (32, 33, 92, 93)])
    for tb in range(4):
        for grp in range(2):
            O = 22 if grp == 0 else 82
            A(*conv(tb, grp, O))
            for pc in range(3):
                A.vmem(f'buffer_store_dwordx4 {v(O+4*pc, 4)}, v20, {s(sWS, 4)}, s{68+3*grp+pc} offen offset:{256*tb} sc1', 'q')
    stamp(A, 4)
    for f in b2[:10]: f(A)
    A.wait_vm('q'); flag_store(A, 's65')
    for f in b2[10:] + b3: f(A)
    A('s_branch Lcommon')

def spare_role(A):
    A('Lspare:'); A.vm = []
    A('s_waitcnt lgkmcnt(0)')
    common_consts(A)
    A('s_cmp_eq_u32 s2, 252', 's_cbranch_scc0 Lsp_noz')
    A('v_lshlrev_b32 v2, 4, v0', 'v_mov_b32 v34, 0', 'v_mov_b32 v35, 0', 'v_mov_b32 v36, 0', 'v_mov_b32 v37, 0', f's_mov_b32 s64, {WS_FL}')
    for k in range(3): A(f'buffer_store_dwordx4 v[34:37], v2, {s(sWS, 4)}, s64 offen sc1', 's_add_u32 s64, s64, 4096')
    A('s_waitcnt vmcnt(0)', 's_barrier'); flag_store(A, '0', sD)
    A('Lsp_noz:')
    A(*retile_addr())
    A('s_sub_u32 s64, s2, 252', 's_lshl_b32 s64, s64, 2', f's_add_u32 s64, s64, s{sW}', f's_add_u32 s{sY}, s64, 624')
    A('Lsp_loop:')
    retile_scalar(A)
    for f in retile_loads(): f(A)
    A('s_waitcnt vmcnt(0)')
    A.run(retile_work())
    A(f's_add_u32 s{sY}, s{sY}, 16', f's_cmp_lt_u32 s{sY}, 680', 's_cbranch_scc1 Lsp_loop')
    A.run(wq_dma()); A.run(z_issue())
    A('s_waitcnt vmcnt(0)', 's_barrier')
    z_check(A)
    A('s_sub_u32 s64, s2, 252', 's_lshl_b32 s64, s64, 2', f's_add_u32 s64, s64, {F_E + 156*4}')
    flag_store(A, 's64')
    for part in wq_build(34): A.run(part); A('s_waitcnt lgkmcnt(0)')
    A.run(e_issue()); A('s_waitcnt vmcnt(0)'); e_check(A)
    for i in range(60): bload(i)(A)

AB, AC2, PHI = 96, 176, 22
def aload(u, tb):
    off = u if u < 12 else None
    r = AB + 16*(u % 5) + 4*tb
    if u < 12: pre = [f's_add_u32 s64, s{sA+tb}, {(u // 4)*4096}']; imm = (u % 4)*1024
    else: pre = [f's_add_u32 s64, s{sA+tb}, {((u - 12) // 4)*4096}']; imm = ((u - 12) % 4)*1024
    return VM(f'buffer_load_dwordx4 {v(r, 4)}, v{vL16}, {s(sWS, 4)}, s64 offen offset:{imm} sc1', f'A{u}', pre)

def common(A):
    A('Lcommon:'); A.vm = []
    stamp(A, 5)
    A('v_mov_b32 v34, 0', 'v_mov_b32 v35, 0', 'v_mov_b32 v36, 0', 'v_mov_b32 v37, 0', 'v_min_u32 v2, 188, v0', 'v_lshlrev_b32 v2, 4, v2',
      f'v_add_u32 v2, {KVB}, v2', 'ds_write_b128 v2, v[34:37]')
    A('s_and_b32 s76, s2, 7', 's_lshr_b32 s77, s2, 3')
    A('s_lshl_b32 s64, s76, 2', 's_lshr_b32 s65, s77, 3', 's_add_u32 s64, s64, s65', 's_lshl_b32 s64, s64, 2', f's_add_u32 s64, s64, s{sW}',
      's_lshl_b32 s64, s64, 2', f's_add_u32 s{sJ0}, s64, {F_Q}', 'v_mov_b32 v4, 0')
    A(f's_mul_i32 s64, s{sM2}, 52429', 's_lshr_b32 s64, s64, 17',
      f's_lshl_b32 s65, s{sM2}, 6', 's_add_u32 s65, s65, 63', 's_mul_i32 s65, s65, 52429', 's_lshr_b32 s65, s65, 23',
      's_sub_u32 s65, s65, s64', 's_lshl_b32 s65, s65, 4', 's_lshl_b32 s64, s64, 8', f's_mul_i32 s66, s{sW}, 48', 's_add_u32 s64, s64, s66',
      f's_add_u32 s{sJ1}, s64, {F_H}',
      f'v_and_b32 v2, 15, v{vL}', 'v_min_u32 v2, 11, v2', f'v_and_b32 v3, 16, v{vL}', 'v_mul_u32_u24 v3, s65, v3', 'v_lshl_add_u32 v84, v2, 2, v3')
    A(f'v_lshrrev_b32 v2, 4, v{vL}', 'v_cmp_gt_u32 vcc, 3, v2', f'v_and_b32 v3, 15, v{vL}', 'v_lshlrev_b32 v3, 4, v3', 'v_cndmask_b32 v2, 0, v2, vcc',
      'v_lshl_add_u32 v85, v2, 12, v3',
      's_lshl_b32 s64, s76, 5', 's_add_u32 s64, s64, s77', 's_mul_i32 s64, s64, 12288', f's_lshl_b32 s65, s{sW}, 10', 's_add_u32 s64, s64, s65',
      f's_add_u32 s{sJ2}, s64, {WS_Q}')
    H_TXT = f'buffer_load_dword v86, v84, {s(sWS, 4)}, s{sJ1} offen sc1'
    A.vmem(H_TXT, 'hp')
    poll_block(A, [87], f'buffer_load_dword v87, v4, {s(sWS, 4)}, s{sJ0} offen sc1')
    stamp(A, 6)
    QF = 34
    for tb in range(4): A.vmem(f'buffer_load_dwordx4 {v(QF+4*tb, 4)}, v85, {s(sWS, 4)}, s{sJ2} offen offset:{256*tb} sc1', 'q')
    A('s_mov_b32 s78, 0', 'v_cmp_eq_u32 vcc, 0, v86', 's_cbranch_vccnz Lnoearly')
    keep = list(A.vm)
    for u in range(5):
        for tb in range(4): aload(u, tb)(A)
    A.vm = keep
    A('s_mov_b32 s78, 1', 's_waitcnt vmcnt(20)', 's_branch Learly', 'Lnoearly:', 's_waitcnt vmcnt(0)', 'Learly:')
    p = lambda tb: [50+4*tb, 51+4*tb, 52+4*tb, 53+4*tb, 66+4*tb]
    n_ = lambda tb: [67+4*tb, 68+4*tb, 69+4*tb, 86+2*tb, 87+2*tb]
    for tb in range(4): A(MF(v(50+4*tb, 4), v(vWQ, 4), v(QF+4*tb, 4), 0), MF(v(66+4*tb, 4), v(vWQ+4, 4), v(QF+4*tb, 4), 0))
    R = range(4)
    x_, y_ = (lambda tb: 34+4*tb), (lambda tb: 35+4*tb)
    def allred(op):
        A(*[f'v_permlane32_swap_b32 v{x_(t)}, v{y_(t)}' for t in R]); A(*[f'{op} v{x_(t)}, v{x_(t)}, v{y_(t)}' for t in R])
        A(*[f'v_mov_b32 v{y_(t)}, v{x_(t)}' for t in R]); A(*[f'v_permlane16_swap_b32 v{x_(t)}, v{y_(t)}' for t in R])
        A(*[f'{op} v{x_(t)}, v{x_(t)}, v{y_(t)}' for t in R]); A(*[f'v_mov_b32 v{y_(t)}, v{x_(t)}' for t in R])
        A(*[f'v_permlane32_swap_b32 v{x_(t)}, v{y_(t)}' for t in R])
    A(*[f'v_max3_f32 v{x_(t)}, v{p(t)[0]}, v{p(t)[1]}, v{p(t)[2]}' for t in R])
    A(*[f'v_max3_f32 v{y_(t)}, -v{p(t)[0]}, -v{p(t)[1]}, -v{p(t)[2]}' for t in R])
    A(*[f'v_max3_f32 v{x_(t)}, v{x_(t)}, v{p(t)[3]}, v{p(t)[4]}' for t in R])
    A(*[f'v_max3_f32 v{y_(t)}, v{y_(t)}, -v{p(t)[3]}, -v{p(t)[4]}' for t in R])
    allred('v_max_f32')
    A(*[f'v_mul_f32 v{x_(t)}, 0xbfb8aa3b, v{x_(t)}' for t in R]); A(*[f'v_mul_f32 v{y_(t)}, 0xbfb8aa3b, v{y_(t)}' for t in R])
    for t in R:
        A(*[f'v_fma_f32 v{n_(t)[j]}, -v{p(t)[j]}, s{sL}, v{y_(t)}' for j in range(5)])
        A(*[f'v_fma_f32 v{p(t)[j]}, v{p(t)[j]}, s{sL}, v{x_(t)}' for j in range(5)])
    for t in R: A(*[f'v_exp_f32 v{r}, v{r}' for r in p(t) + n_(t)])
    A(*[f'v_add_f32 v{x_(t)}, v{p(t)[0]}, v{p(t)[1]}' for t in R]); A(*[f'v_add_f32 v{y_(t)}, v{n_(t)[0]}, v{n_(t)[1]}' for t in R])
    for j in range(2, 5):
        A(*[f'v_add_f32 v{x_(t)}, v{x_(t)}, v{p(t)[j]}' for t in R]); A(*[f'v_add_f32 v{y_(t)}, v{y_(t)}, v{n_(t)[j]}' for t in R])
    allred('v_add_f32')
    A(*[f'v_rcp_f32 v{x_(t)}, v{x_(t)}' for t in R]); A(*[f'v_rcp_f32 v{y_(t)}, v{y_(t)}' for t in R])
    for t in R:
        A(*[f'v_mul_f32 v{r}, v{r}, v{x_(t)}' for r in p(t)]); A(*[f'v_mul_f32 v{r}, v{r}, v{y_(t)}' for r in n_(t)])
    for t in R:
        sq = p(t) + n_(t)
        A(*[f'v_cvt_pk_bf16_f32 v{PHI+6*t+j}, v{sq[2*j]}, v{sq[2*j+1]}' for j in range(5)], f'v_mov_b32 v{PHI+6*t+5}, 0')
    A(f'v_mov_b32 v{PHI+24}, 0', f'v_mov_b32 v{PHI+25}, 0')
    stamp(A, 7)
    A('v_min_u32 v2, 209, v0', 'v_lshlrev_b32 v85, 4, v2', 'v_mul_u32_u24 v3, 3121, v2', 'v_lshrrev_b32 v3, 16, v3',
      'v_mul_u32_u24 v5, 21, v3', 'v_sub_u32 v2, v2, v5', f'v_mul_u32_u24 v2, {KVBP}, v2', f'v_add_u32 v2, {KVB}, v2')
    for k in range(2):
        A(f'v_lshl_add_u32 v5, v3, 2, {2*k}', 'v_mul_u32_u24 v16, 6554, v5', 'v_lshrrev_b32 v16, 16, v16', 'v_mul_u32_u24 v16, 12, v16',
          'v_lshl_add_u32 v5, v5, 1, v16', f'v_add_u32 v{86+k}, v2, v5')
    A(f'v_lshrrev_b32 v2, 4, v{vL}', f'v_lshlrev_b32 v3, 5, v2', f'v_add_u32 v3, {KVB}, v3', f'v_and_b32 v5, 15, v{vL}',
      f'v_mul_u32_u24 v16, {KVBP}, v5', 'v_add_u32 v88, v3, v16', f'v_and_b32 v16, 3, v{vL}', f'v_mul_u32_u24 v16, {KVBP}, v16',
      f'v_add_u32 v16, {16*KVBP}, v16', 'v_add_u32 v89, v3, v16', f'v_add_u32 v90, {20*KVBP}, v3')
    A('s_mul_i32 s64, s77, 5')
    for r, src in ((91, 'v2'), (92, '4')):
        A(f'v_add_u32 v3, s64, {src}' if src == 'v2' else 'v_mov_b32 v3, s64')
        if src != 'v2': A('v_add_u32 v3, 4, v3')
        A('v_lshrrev_b32 v16, 3, v3', 'v_lshlrev_b32 v16, 10, v16', 'v_and_b32 v17, 3, v3', 'v_lshl_add_u32 v16, v17, 8, v16',
          'v_bfe_u32 v17, v3, 2, 1', 'v_lshl_add_u32 v16, v17, 3, v16', f'v_lshl_add_u32 v{r}, v5, 4, v16')
    A(f'v_mov_b32 v3, {BIG:#x}', f'v_cmp_gt_u32 vcc, 16, v{vL}', f'v_and_b32 v93, 7, v{vL}', 'v_cndmask_b32 v92, v3, v92, vcc', 'v_lshlrev_b32 v93, 2, v93')
    A('s_lshl_b32 s64, s77, 5', f's_add_u32 s72, s64, {F_KV}',
      f's_mul_i32 s64, s77, {8*KVP}', f's_add_u32 s73, s64, {WS_KV}',
      's_lshl_b32 s64, s76, 2', f's_add_u32 s64, s64, s{sW}', f's_mul_i32 s74, s64, {4*68*1024}', f's_add_u32 s74, s74, {48*1024}',
      's_lshl_b32 s64, s64, 5', 's_add_u32 s64, s64, s77', 's_lshl_b32 s64, s64, 2', f's_add_u32 s75, s64, {F_O}',
      f's_lshl_b32 s64, s{sM2}, 7', f's_lshl_b32 s65, s{sW}, 5', 's_add_u32 s64, s64, s65', f's_add_u32 s79, s64, {F_O}')
    A('s_cmp_eq_u32 s78, 1', 's_cbranch_scc1 Lhave_a')
    keep = list(A.vm)
    poll_block(A, [2], f'buffer_load_dword v2, v84, {s(sWS, 4)}, s{sJ1} offen sc1')
    A.vm = keep
    for u in range(5):
        for tb in range(4): aload(u, tb)(A)
    A('Lhave_a:')
    stamp(A, 8)
    KV_TXT = f'buffer_load_dword v84, v93, {s(sWS, 4)}, s72 offen sc1'
    O_TXT = f'buffer_load_dword v84, v93, {s(sWS, 4)}, s79 offen sc1'
    def hstep(u, fill):
        A.wait_vm(f'A{u}')
        mf = [MF(v(AC2 + 20*tb + 4*nb, 4), a(breg(5*u+nb), 4), v(AB + 16*(u % 5) + 4*tb, 4), 0 if u == 0 else v(AC2 + 20*tb + 4*nb, 4))
              for tb in range(4) for nb in (range(5) if tb % 2 == 0 else range(4, -1, -1))]
        ev = list(fill)
        if u + 5 < 12: ev += [(5*tb + 5, aload(u + 5, tb)) for tb in range(4)]
        A.weave(mf, ev)
    def oB(u):
        return [bload(5*u + nb, None, u) for nb in range(5)]
    adj = [f's_mul_i32 s65, s{sW}, {-7*1024}', f's_add_u32 s65, s65, {48*1024}'] + [f's_add_u32 s{sB+k}, s{sB+k}, s65' for k in range(5)]
    hstep(0, [(1, adj)])
    hstep(1, spread(oB(0), 0, 19))
    hstep(2, spread(oB(1), 0, 19))
    hstep(3, [(0, VM(KV_TXT, 'kvp'))] + spread(oB(2), 1, 19))
    hstep(4, spread(oB(3), 0, 19))
    hstep(5, spread(oB(4), 0, 19))
    A.wait_vm('kvp'); poll_check(A, [84], KV_TXT)
    stamp(A, 9)
    KP = 48
    kl = [VM(f'buffer_load_dwordx4 {v(KP+4*m, 4)}, v85, {s(sWS, 4)}, s73 offen sc1', 'kp', [f's_add_u32 s73, s73, {KVP}'] if m else []) for m in range(8)]
    A.run(kl)
    hstep(6, [])
    A(*[f's_add_u32 s{sA+k}, s{sA+k}, s65' for k in range(4)])
    hstep(7, [])
    A.wait_vm('kp')
    A(*[f'v_pk_add_f32 {v(KP+2*j, 2)}, {v(KP+2*j, 2)}, {v(KP+16+2*j, 2)}' for j in range(8)])
    A(*[f'v_pk_add_f32 {v(KP+2*j, 2)}, {v(KP+2*j, 2)}, {v(KP+8+2*j, 2)}' for j in range(4)])
    A(*[f'v_pk_add_f32 {v(KP+2*j, 2)}, {v(KP+2*j, 2)}, {v(KP+4+2*j, 2)}' for j in range(2)])
    A(f'v_cvt_pk_bf16_f32 v2, v{KP}, v{KP+1}', f'v_cvt_pk_bf16_f32 v3, v{KP+2}, v{KP+3}')
    A('s_waitcnt lgkmcnt(0)', 's_barrier')
    A('ds_write_b32 v86, v2', 'ds_write_b32 v87, v3', 's_waitcnt lgkmcnt(0)', 's_barrier')
    KA = 48
    A(*[f'ds_read_b128 {v(KA + 8*b + 4*sg, 4)}, v{88+b} offset:{16*sg}' for b in range(3) for sg in range(2)])
    A('s_waitcnt lgkmcnt(0)')
    def num(tb):
        D = 72 if tb % 2 == 0 else 8
        return [MF(v(D+4*b, 4), v(KA + 8*b + 4*sg, 4), v(PHI + 6*tb + 4*sg, 4), 0 if sg == 0 else v(D+4*b, 4)) for sg in range(2) for b in (2, 0, 1)]
    def fin(tb):
        D = 72 if tb % 2 == 0 else 8
        A(f'v_add_f32 v{D+8}, 0x358637bd, v{D+8}', f'v_rcp_f32 v{D+8}, v{D+8}')
        A(*[f'v_pk_mul_f32 {v(D+2*j, 2)}, {v(D+2*j, 2)}, {v(D+8, 2)} op_sel_hi:[1,0]' for j in range(4)])
        A(*[f'v_cvt_pk_bf16_f32 v{D+8+j}, v{D+2*j}, v{D+2*j+1}' for j in range(4)])
        A.vmem(f'buffer_store_dwordx2 {v(D+8, 2)}, v91, {s(sWS, 4)}, s74 offen sc1', 'o')
        A.vmem(f'buffer_store_dwordx2 {v(D+10, 2)}, v92, {s(sWS, 4)}, s74 offen sc1', 'o')
        A(f's_add_u32 s74, s74, {68*1024}')
    A(*num(0)); A(*num(1)); fin(0); A(*num(2)); fin(1); A(*num(3)); fin(2); fin(3)
    stamp(A, 10)
    fa = []
    for r in range(3):
        fa += [[f'v_add_u32 v2, {256*r}, v0', 'v_mul_u32_u24 v3, 6554, v2', 'v_lshrrev_b32 v3, 16, v3', 'v_mul_u32_u24 v5, 10, v3', 'v_sub_u32 v2, v2, v5'],
               [f'v_mul_u32_u24 v5, 1280, v3', f'v_lshl_add_u32 v{53+r}, v2, 4, v5', f'v_mul_u32_u24 v3, {RP}, v3', 'v_lshrrev_b32 v5, 1, v2'],
               ['v_lshl_add_u32 v3, v5, 6, v3', 'v_and_b32 v2, 1, v2', f'v_lshl_add_u32 v{50+r}, v2, 3, v3']]
    fa += [[f'v_mov_b32 v3, {BIG:#x}', 'v_cmp_gt_u32 vcc, 128, v0', f's_mul_i32 s76, s{sM2}, {64*1280}', 'v_cndmask_b32 v55, v3, v55, vcc',
            f's_mul_i32 s77, s{sNT}, 160', 's_add_u32 s76, s76, s77'], lambda A: srd(A, sX, P_X, 2048*1280), lambda A: srd(A, sT, P_OUT, 2048*1280)]
    xl = [VM(f'buffer_load_dwordx4 {v(56+4*r, 4)}, v{53+r}, {s(sX, 4)}, s76 offen', 'x') for r in range(3)]
    hstep(8, spread(fa, 0, 19))
    hstep(9, spread(xl, 0, 10))
    A.wait_vm('o'); flag_store(A, 's75')
    hstep(10, [])
    hstep(11, [(8, VM(O_TXT, 'op'))])
    A.wait_vm('op'); poll_check(A, [84], O_TXT)
    stamp(A, 11)
    for u in range(12, 17):
        for tb in range(4): aload(u, tb)(A)
    A(f'v_and_b32 v2, 15, v{vL}', f'v_mul_u32_u24 v2, {RP}, v2', f'v_and_b32 v3, 48, v{vL}', 'v_add_u32 v2, v2, v3', f's_mul_i32 s64, s{sW}, {RW}',
      'v_add_u32 v48, s64, v2')
    wr = lambda tb: [f'ds_write_b128 v48, {v(AC2 + 20*tb + 4*nb, 4)} offset:{tb*16*RP + 64*nb}' for nb in range(5)]
    for u in (12, 13):
        A.wait_vm(f'A{u}')
        A(*[MF(v(AC2 + 20*tb + 4*nb, 4), a(breg(5*(u-12)+nb), 4), v(AB + 16*(u % 5) + 4*tb, 4), v(AC2 + 20*tb + 4*nb, 4)) for tb in range(4) for nb in range(5)])
    A.wait_vm('A16')
    for tb in range(4):
        mf = [MF(v(AC2 + 20*tb + 4*nb, 4), a(breg(5*(u-12)+nb), 4), v(AB + 16*(u % 5) + 4*tb, 4), v(AC2 + 20*tb + 4*nb, 4)) for u in (14, 15, 16) for nb in range(5)]
        A.weave(mf, spread(wr(tb - 1), 4, 14) if tb else [])
    A(*wr(3))
    A('s_waitcnt lgkmcnt(0)', 's_barrier')
    stamp(A, 12)
    def rd(r): return [f'ds_read_b64 {v(96 + 32*r + 8*w + 2*q, 2)}, v{50+r} offset:{w*RW + 16*q}' for w in range(4) for q in range(4)]
    def out(r):
        S = 96 + 32*r; X = 56 + 4*r
        A(*[f'v_pk_add_f32 {v(S+2*j, 2)}, {v(S+2*j, 2)}, {v(S+16+2*j, 2)}' for j in range(8)])
        A(*[f'v_pk_add_f32 {v(S+2*j, 2)}, {v(S+2*j, 2)}, {v(S+8+2*j, 2)}' for j in range(4)])
        col = lambda c: S + 2*(c & 3) + (c >> 2)
        for j in range(4):
            A(f'v_lshlrev_b32 v2, 16, v{X+j}', f'v_and_b32 v3, 0xffff0000, v{X+j}',
              f'v_add_f32 v2, v2, v{col(2*j)}', f'v_add_f32 v3, v3, v{col(2*j+1)}', f'v_cvt_pk_bf16_f32 v{X+j}, v2, v3')
        A(f'buffer_store_dwordx4 {v(X, 4)}, v{53+r}, {s(sT, 4)}, s76 offen')
    r0, r1 = rd(0), rd(1)
    A(*r0); A('s_waitcnt lgkmcnt(4)'); A(*r1[:8]); A('s_waitcnt lgkmcnt(8)'); A(*r1[8:])
    out(0)
    A(f's_cmp_lt_u32 s{sW}, 2', 's_cbranch_scc0 Lfin2')
    A('s_waitcnt lgkmcnt(0)'); A(*rd(2)); out(1); A('s_waitcnt lgkmcnt(0)'); out(2)
    A('s_branch Lfin', 'Lfin2:', 's_waitcnt lgkmcnt(0)')
    out(1)
    A('Lfin:')
    if C.diag:
        A('s_waitcnt vmcnt(0)'); stamp(A, 13)
        A(f's_lshl_b32 s64, s2, 2', f's_add_u32 s64, s64, s{sW}', 's_lshl_b32 s64, s64, 8', f's_add_u32 s64, s64, {WS_DG}', f'v_lshlrev_b32 v2, 2, v{vL}',
          f'buffer_store_dword v{vDG}, v2, {s(sWS, 4)}, s64 offen')

def build():
    _lab[0] = 0
    A = Asm()
    A(f'{NAME}:')
    A('s_cmp_ge_u32 s2, 256', 's_cbranch_scc1 Lend')
    A('s_load_dwordx16 s[4:19], s[0:1], 0', 's_load_dwordx4 s[20:23], s[0:1], 64', 's_load_dwordx2 s[24:25], s[0:1], 80')
    A('s_getpc_b64 s[64:65]', 'Lpc:', 's_mov_b32 s66, Lend-Lpc', 's_mov_b32 s67, 0x20000', 'v_lshlrev_b32 v2, 7, v0',
      'buffer_load_dword v94, v2, s[64:67], 0 offen', 'v_add_u32 v2, 0x8000, v2', 'buffer_load_dword v94, v2, s[64:67], 0 offen')
    A(f'v_and_b32 v{vL}, 63, v0', 'v_lshrrev_b32 v2, 6, v0', f'v_readfirstlane_b32 s{sW}, v2')
    if C.diag: A(f'v_mov_b32 v{vDG}, 0'); stamp(A, 0)
    roles(A)
    qkv_role(A)
    roles_ffn(A)
    ffn_role(A)
    spare_role(A)
    common(A)
    A('Lend:', 's_endpgm')
    return A

HEAD = open('parallel_sum__linear_kernel_hedgehog__glu_gated_swiglu__prompt.s.ref').read().split('; Override launch')[0]
def full_text():
    A = build()
    return (HEAD + f'; @launch grid=(256,1,1) block=(256,1,1) lds={LDS}\n'
            '; Generated by gen/kernel.py: one persistent launch, phase 1 (LN-folded QKV / gate-up GEMM + epilogues),\n'
            '; flag hand-offs through d_ws, phase 2 (out = x + [h | o] @ [w2 ; wo]).\n'
            '.amdgcn_target "amdgcn-amd-amdhsa--gfx950"\n.text\n'
            f'.globl {NAME}\n.p2align 8\n.type {NAME},@function\n' + A.text() +
            '.fill 64, 4, 0xBF800000\n.section .rodata,"a"\n.p2align 6\n'
            f'.amdhsa_kernel {NAME}\n  .amdhsa_next_free_vgpr 512\n  .amdhsa_next_free_sgpr 102\n  .amdhsa_accum_offset 256\n'
            '  .amdhsa_group_segment_fixed_size 0\n  .amdhsa_kernarg_size 88\n  .amdhsa_user_sgpr_count 2\n'
            '  .amdhsa_user_sgpr_kernarg_segment_ptr 1\n  .amdhsa_system_sgpr_workgroup_id_x 1\n.end_amdhsa_kernel\n'), A

if __name__ == '__main__':
    for kv in sys.argv[2:]:
        k, x = kv.split('=')
        setattr(C, k, type(getattr(C, k))(eval(x)) if not isinstance(getattr(C, k), str) else x)
    t, A = full_text()
    open(sys.argv[1], 'w').write(t)
    print('pads', A.pads, 'lines', len(A.L))
```

```python
import sys
from asmlib import *

NAME = 'parallel_sum__linear_kernel_hedgehog__glu_gated_swiglu__prompt_kernel'
WS_A, WS_BT, WS_Q, WS_KV, WS_ST, WS_CS, WS_FL, WS_DG, WS_END = 0, 0x900000, 0xC00000, 0xF00000, 0x1000000, 0x1010000, 0x1040000, 0x10C0000, 0x1100000
F_E, F_H, F_Q, F_KV, F_O = [WS_FL + 128*n for n in (0, 256, 880, 1008, 1264)]
KVP = 3456
BIG = 0x7F000000
SLOT = 53248; SP = 3*SLOT; CSS = SP + 1024; BO = 67584; KVB = 153600; KVBP = 144; IMG = 528; RP = 336; RW = 64*RP
QP = 10240
LDS = 163840
P_X, P_WQKV, P_WPHI, P_WO, P_W1, P_W3, P_W2, P_OUT, P_DBG, P_WS = 4, 6, 8, 10, 14, 16, 18, 20, 22, 24
sX, sWA, sWB, sWS, sT, sD, sT2 = 28, 32, 36, 40, 44, 48, 52
sW, sROLE, sMT, sCT, sOX, sOW, sMX, sMW = 56, 57, 58, 59, 60, 61, 62, 63
sL, sP0, sP1, sY, sCNT = 80, 82, 83, 84, 85
sB, sA = 86, 91
sM2, sNT, sJ0, sJ1, sJ2 = 95, 96, 97, 98, 99
sMO, sETA, sBO = 26, 27, 3
vL, vL16, vZ, vDX, vDW, vONE, vRX, vRW = 1, 6, 7, 8, 16, 21, 22, 28
vWQ = 8; vDG = 95
ACC = 96
LOG2E = '0x3fb8aa3b'

class Cfg:
    diag = False; cap = 40000; pre = 2; aux = ''; rd_end = 30; split = 7; p2 = '4x8'; steps = False; eF = 11; eP = 13; eC = 15; align = True; nob = False; cyc = False; probe = ''; nojobs = False; notail = False
C = Cfg()

def stamp(A, k):
    if C.diag:
        A('s_memrealtime s[100:101]', 's_waitcnt lgkmcnt(0)', f'v_writelane_b32 v{vDG}, s100, {k}')
        if C.cyc: A('s_memtime s[100:101]', 's_waitcnt lgkmcnt(0)', f'v_writelane_b32 v{vDG}, s100, {k+32}')

_lab = [0]
def poll_check(A, rg, reissue):
    _lab[0] += 1; n = _lab[0]
    def chk():
        r = rg[0]
        if len(rg) == 4:
            A(f'v_min_u32 v{rg[0]}, v{rg[0]}, v{rg[1]}', f'v_min3_u32 v{rg[0]}, v{rg[0]}, v{rg[2]}, v{rg[3]}')
        A(f'v_cmp_eq_u32 vcc, 0, v{r}', f's_cbranch_vccz Lok{n}')
    chk()
    A(f's_mov_b32 s{sCNT}, {C.cap}', f'Lsp{n}:'); A.run(reissue); A('s_waitcnt vmcnt(0)')
    chk()
    A(f's_sub_u32 s{sCNT}, s{sCNT}, 1', f's_cmp_lg_u32 s{sCNT}, 0', f's_cbranch_scc1 Lsp{n}', f'Lok{n}:')

def poll_block(A, rg, txt):
    A.vmem(txt, 'poll'); A('s_waitcnt vmcnt(0)'); poll_check(A, rg, txt)

def flag_store(A, soff, srd_=sWS):
    A(f'buffer_store_dword v{vONE}, v{vZ}, {s(srd_, 4)}, {soff} offen sc1')

def roles(A):
    A('s_and_b32 s64, s2, 7', 's_lshr_b32 s65, s2, 3', 's_lshr_b32 s66, s64, 2', 's_and_b32 s67, s64, 3')
    A('s_cmp_lt_u32 s65, 12', 's_cbranch_scc0 Lrole_ffn')
    A('s_and_b32 s68, s65, 3', f's_lshl_b32 s{sMT}, s66, 2', f's_add_u32 s{sMT}, s{sMT}, s68',
      's_lshr_b32 s68, s65, 2', f's_lshr_b32 s{sROLE}, s68, 1',
      's_lshl_b32 s69, s67, 1', 's_add_u32 s69, s69, s68',
      's_cmp_eq_u32 s68, 2', f's_cselect_b32 s{sCT}, s67, s69')

def roles_ffn(A):
    A('Lrole_ffn:')
    A('s_sub_u32 s68, s65, 12', 's_mul_i32 s69, s68, 43', 's_lshr_b32 s69, s69, 7',
      's_mul_i32 s70, s69, 3', 's_sub_u32 s70, s68, s70',
      's_mul_i32 s71, s66, 7', f's_add_u32 s{sMT}, s69, s71',
      's_mul_i32 s71, s67, 3', f's_add_u32 s{sCT}, s71, s70',
      f's_cmp_lt_u32 s{sMT}, 13', 's_cbranch_scc1 Lffn',
      f's_mov_b32 s{sMT}, 6', f's_add_u32 s{sCT}, s71, 2',
      's_cmp_eq_u32 s68, 19', 's_cbranch_scc1 Lspare')

def role_of(wg):
    xcd = wg & 7; loc = wg >> 3; a_ = xcd >> 2; b = xcd & 3
    if loc < 12:
        m = 4*a_ + (loc & 3); r = loc >> 2
        return (1, m, b) if r == 2 else (0, m, 2*b + r)
    e = loc - 12
    mt = e // 3 + 7*a_; ft = 3*b + e % 3
    if mt < 13: return (2, mt, ft)
    return (3 if e == 19 else 2, 6, 3*b + 2)

def common_consts(A):
    srd(A, sWS, P_WS, WS_END); srd(A, sD, P_DBG, 256)
    A(f'v_lshlrev_b32 v{vL16}, 4, v{vL}', f'v_mov_b32 v{vONE}, 1', f'v_mov_b32 v{vZ}, {BIG:#x}',
      f'v_cmp_eq_u32 vcc, 0, v{vL}', f'v_cndmask_b32 v{vZ}, v{vZ}, 0, vcc')
    A(f's_mov_b32 s{sL}, {LOG2E}', f's_mov_b32 s{sL+1}, {LOG2E}', f's_mov_b32 s{sP0}, 0x05040100', f's_mov_b32 s{sP1}, 0x07060302')
    A(f's_lshl_b32 s12, s{sW}, 10', 's_mov_b32 s78, 0xffff0000')
    A('s_and_b32 s64, s2, 7', 's_lshr_b32 s65, s2, 3', 's_and_b32 s66, s65, 3', f's_lshl_b32 s{sETA}, s64, 2',
      f's_add_u32 s{sETA}, s{sETA}, s66', f's_lshr_b32 s{sMO}, s65, 2')
    if C.p2 == '4x8': A(f's_mov_b32 s{sM2}, s{sETA}', f's_mov_b32 s{sNT}, s{sMO}')
    else: A('s_lshr_b32 s66, s64, 1', 's_lshl_b32 s66, s66, 3', 's_and_b32 s67, s65, 7', f's_add_u32 s{sM2}, s66, s67',
            's_and_b32 s66, s64, 1', 's_lshl_b32 s66, s66, 2', 's_lshr_b32 s67, s65, 3', f's_add_u32 s{sNT}, s66, s67')
    A(f's_mul_i32 s{sBO}, s{sW}, {-7*1024}', f's_add_u32 s{sBO}, s{sBO}, {48*1024}')
    A(f's_mul_i32 s64, s{sNT}, {5*68*1024}', f's_mul_i32 s65, s{sW}, {12*1024}', 's_add_u32 s64, s64, s65',
      f's_add_u32 s{sB}, s64, {WS_BT}')
    for nb in range(1, 5): A(f's_add_u32 s{sB+nb}, s{sB+nb-1}, {68*1024}')
    A(f's_mul_i32 s64, s{sM2}, {4*68*1024}', f's_add_u32 s{sA}, s64, s65')
    for tb in range(1, 4): A(f's_add_u32 s{sA+tb}, s{sA+tb-1}, {68*1024}')

def setup_x(A, ffn):
    t0, t1, t2, t3 = 2, 3, 4, 5
    nx = 5 if ffn else 8
    A(f's_mul_i32 s64, s{sMT}, {160 if ffn else 256}', f's_mul_i32 s65, s{sW}, {8*nx}', 's_add_u32 s64, s64, s65',
      's_mul_i32 s64, s64, 1280')
    A(f'v_lshrrev_b32 v{t0}, 3, v{vL}', f'v_mul_u32_u24 v{t0}, 1280, v{t0}', f'v_add_u32 v{t0}, s64, v{t0}')
    A(f'v_lshrrev_b32 v{t1}, 4, v{vL}', f'v_and_b32 v{t2}, 7, v{vL}', f'v_xor_b32 v{t1}, v{t1}, v{t2}')
    if ffn:
        A(f's_and_b32 s65, s{sW}, 1', 's_lshl_b32 s65, s65, 2', f'v_xor_b32 v{t1}, s65, v{t1}')
    A(f'v_lshl_add_u32 v{t2}, v{t1}, 4, v{t0}', f'v_xor_b32 v{t1}, 4, v{t1}', f'v_lshl_add_u32 v{t3}, v{t1}, 4, v{t0}')
    for i in range(nx):
        A(f'v_add_u32 v{vDX+i}, {i*10240 - (i % 4)*1024}, v{t2 if i % 2 == 0 else t3}')
    A(f's_mul_i32 s{sMX}, s{sW}, {nx*1024}')

def setup_w(A, ffn):
    t0, t1, t2, t3 = 2, 3, 4, 5
    if ffn:
        A(f's_mul_i32 s64, s{sW}, {16*3072}', f's_lshl_b32 s65, s{sCT}, 8', 's_add_u32 s64, s64, s65')
        A(f'v_lshrrev_b32 v{t0}, 4, v{vL}', f'v_mul_u32_u24 v{t1}, 3072, v{t0}', f'v_add_u32 v{t1}, s64, v{t1}',
          f'v_lshlrev_b32 v{t0}, 1, v{t0}', f'v_and_b32 v{t2}, 15, v{vL}', f'v_xor_b32 v{t0}, v{t0}, v{t2}',
          f'v_lshl_add_u32 v{t2}, v{t0}, 4, v{t1}', f'v_xor_b32 v{t0}, 8, v{t0}', f'v_lshl_add_u32 v{t3}, v{t0}, 4, v{t1}')
        for j in range(4):
            A(f'v_add_u32 v{vDW+j}, {j*4*3072 - j*1024}, v{t2 if j < 2 else t3}')
        A(f's_lshl_b32 s{sMW}, s{sW}, 12', f's_add_u32 s{sMW}, s{sMW}, 20480')
    else:
        A(f's_lshr_b32 s64, s{sW}, 1',
          f's_mul_i32 s65, s{sCT}, 320', 's_mul_i32 s66, s64, 160', 's_add_u32 s65, s65, s66',
          f's_mul_i32 s66, s{sCT}, 160', 's_mul_i32 s67, s64, 1280', 's_add_u32 s66, s66, s67', 's_add_u32 s66, s66, 1280',
          f's_cmp_eq_u32 s{sROLE}, 1', 's_cselect_b32 s65, s65, s66',
          f's_and_b32 s64, s{sW}, 1', 's_mul_i32 s64, s64, 320')
        for j in range(5):
            A(f'v_add_u32 v{t0}, s64, v{vL}', f'v_add_u32 v{t0}, {64*j}, v{t0}',
              f'v_mul_u32_u24 v{t1}, 6554, v{t0}', f'v_lshrrev_b32 v{t1}, 16, v{t1}',
              f'v_mul_u32_u24 v{t2}, 10, v{t1}', f'v_sub_u32 v{t0}, v{t0}, v{t2}',
              f'v_lshrrev_b32 v{t2}, 1, v{t1}', f'v_xor_b32 v{t2}, v{t2}, v{t1}', f'v_and_b32 v{t2}, 4, v{t2}',
              f'v_mul_u32_u24 v{t2}, 3, v{t2}', f'v_xor_b32 v{t1}, v{t1}, v{t2}',
              f'v_mul_u32_u24 v{t1}, 3840, v{t1}', f'v_lshl_add_u32 v{t1}, v{t0}, 4, v{t1}',
              f'v_add_u32 v{t1}, s65, v{t1}', f'v_subrev_u32 v{vDW+j}, {(j % 4)*1024}, v{t1}')
        A(f's_mul_i32 s{sMW}, s{sW}, 5120', f's_add_u32 s{sMW}, s{sMW}, 32768')

def setup_reads(A, ffn):
    t0, t1, t2, t3 = 2, 3, 4, 5
    WOFF = 20480 if ffn else 32768
    A(f'v_and_b32 v{t0}, 15, v{vL}', f'v_lshrrev_b32 v{t1}, 4, v{vL}',
      f'v_lshrrev_b32 v{t2}, 1, v{t0}', f'v_xor_b32 v{t2}, v{t2}, v{t1}',
      f'v_lshlrev_b32 v{t2}, 4, v{t2}', f'v_lshl_add_u32 v{t2}, v{t0}, 7, v{t2}')
    if not ffn: A(f'v_add_u32 v{t2}, s{sMX}, v{t2}')
    A(f'v_xor_b32 v{t3}, 64, v{t2}')
    for sl in range(3):
        A(f'v_add_u32 v{vRX+2*sl}, {sl*SLOT}, v{t2}', f'v_add_u32 v{vRX+2*sl+1}, {sl*SLOT}, v{t3}')
    A(f'v_bfe_u32 v{t0}, v{vL}, 2, 2', f'v_and_b32 v{t3}, 3, v{vL}')
    if ffn:
        A(f'v_and_b32 v{t2}, 1, v{t1}', f'v_lshl_add_u32 v{t2}, v{t2}, 2, v{t0}',
          f's_lshl_b32 s64, s{sW}, 1', f'v_xor_b32 v{t2}, s64, v{t2}',
          f'v_lshlrev_b32 v{t2}, 5, v{t2}', f'v_lshl_add_u32 v{t2}, v{t3}, 3, v{t2}',
          f'v_lshl_add_u32 v{t0}, v{t1}, 3, v{t0}', f'v_lshl_add_u32 v{t2}, v{t0}, 8, v{t2}',
          f'v_xor_b32 v{t3}, 32, v{t2}')
        for sl in range(3):
            A(f'v_add_u32 v{vRW+2*sl}, {sl*SLOT+WOFF}, v{t2}', f'v_add_u32 v{vRW+2*sl+1}, {sl*SLOT+WOFF}, v{t3}')
    else:
        A(f'v_and_b32 v{t2}, 1, v{t1}', f'v_lshl_add_u32 v{t0}, v{t2}, 2, v{t0}',
          f'v_lshrrev_b32 v{t2}, 1, v{t1}', f'v_lshl_add_u32 v{t0}, v{t2}, 4, v{t0}',
          f'v_mul_u32_u24 v{t0}, 160, v{t0}', f'v_mul_u32_u24 v{t3}, 40, v{t3}', f'v_add_u32 v{t2}, v{t0}, v{t3}')
        for sl in range(3):
            A(f'v_add_u32 v{vRW+2*sl}, {sl*SLOT+WOFF}, v{t2}')

def VM(txt, tag, pre=()):
    return lambda A: (A(*pre), A.vmem(txt, tag))

def dma_list(ffn, slab):
    sl = slab % 3
    out = []
    def grp(mbase, moff, vreg, srd_, so, n, first=()):
        for i in range(n):
            pre = list(first) if i == 0 else []
            if i % 4 == 0: pre += [f's_add_u32 m0, s{mbase}, {moff + i*1024}']
            out.append(VM(f'buffer_load_dwordx4 v{vreg+i}, {s(srd_, 4)}, s{so} offen offset:{(i % 4)*1024} {C.aux} lds', f'slab{slab}', pre))
    if ffn:
        grp(sMX, sl*SLOT, vDX, sX, sOX, 5, [f's_mov_b32 s{sOX}, {slab*128}'])
        grp(sMW, sl*SLOT, vDW, sWA, sOW, 4, [f's_mov_b32 s{sOW}, {slab*64*3072}'])
        grp(sMW, sl*SLOT + 16384, vDW, sWB, sOW, 4)
    else:
        grp(sMX, sl*SLOT, vDX, sX, sOX, 8, [f's_mov_b32 s{sOX}, {slab*128}'])
        grp(sMW, sl*SLOT, vDW, sWA, sOW, 5, [f's_mov_b32 s{sOW}, {slab*64*3840}'])
    return out

def frag_regs(ffn, st):
    base = 56*st
    if ffn: return [base + 4*i for i in range(10)], [base + 40 + 4*i for i in range(4)]
    return [base + 4*i for i in range(4)], [base + 16 + 4*i for i in range(10)]

def read_list(ffn, step):
    slab, s_ = step // 2, step % 2
    sl = slab % 3
    xr, wr = frag_regs(ffn, step % 2)
    X = [f'ds_read_b128 {a(r, 4)}, v{vRX+2*sl+s_} offset:{tb*2048}' for tb, r in enumerate(xr)]
    W = []
    for b, r in enumerate(wr):
        for j in range(2):
            if ffn: W.append(f'ds_read_b64_tr_b16 {a(r+2*j, 2)}, v{vRW+2*sl+(b & 1)} offset:{(b >> 1)*16384 + (32*s_+4*j)*256}')
            else: W.append(f'ds_read_b64_tr_b16 {a(r+2*j, 2)}, v{vRW+2*sl} offset:{(b // 5)*10240 + (32*s_+8*j)*160 + 8*(b % 5)}')
    return (W + X) if ffn else (X + W)

def acc(ffn, tb, cb): return ACC + 4*(tb*4 + cb) if ffn else ACC + 4*(tb*10 + cb)
def MF(d, A_, B_, c): return f'v_mfma_f32_16x16x32_bf16 {d}, {A_}, {B_}, {c}'

def mfma_list(ffn, step):
    xr, wr = frag_regs(ffn, step % 2)
    if ffn: order = [(tb, cb) for tb in range(10) for cb in (range(4) if tb % 2 == 0 else range(3, -1, -1))]
    else: order = [(tb, cb) for cb in range(10) for tb in (range(4) if cb % 2 == 0 else range(3, -1, -1))]
    return [MF(v(acc(ffn, tb, cb), 4), a(wr[cb], 4), a(xr[tb], 4), 0 if step == 0 else v(acc(ffn, tb, cb), 4)) for tb, cb in order]

def mainloop(A, ffn, head, extra, preb={}):
    nx = 5 if ffn else 8
    d0 = dma_list(ffn, 0)
    setup_x(A, ffn)
    A('s_waitcnt lgkmcnt(0)')
    srd(A, sX, P_X, 2048*1280)
    for f in d0[:nx]: f(A)
    setup_w(A, ffn)
    if ffn: srd(A, sWA, P_W1, 640*3072); srd(A, sWB, P_W3, 640*3072)
    else: srd(A, sWA, P_WQKV, 640*3840)
    for f in d0[nx:]: f(A)
    setup_reads(A, ffn)
    for slab in range(1, C.pre):
        for f in dma_list(ffn, slab): f(A)
    common_consts(A)
    stamp(A, 1)
    A.wait_vm('slab0'); A('s_barrier')
    stamp(A, 2)
    A(*read_list(ffn, 0)); A('s_waitcnt lgkmcnt(0)')
    pend = [f for slab in range(C.pre, 3) for f in dma_list(ffn, slab)]
    for step in range(20):
        slab = step // 2
        if step % 2 == 1:
            if step < 19: A.wait_vm(f'slab{slab+1}')
            if step in preb: preb[step](A)
            A('s_barrier')
            if slab + 3 < 10: pend = dma_list(ffn, slab + 3)
        if step in head: head[step](A)
        if step % 2 == 1 and C.steps: stamp(A, 16 + step // 2)
        rd = read_list(ffn, step + 1) if step < 19 else []
        if step % 2 == 1: dm, pend = pend[:C.split], pend[C.split:]
        else: dm, pend = pend, []
        ev = spread(rd, 0, C.rd_end) + spread(extra.get(step, []), 0.2, 37) + spread(dm, 2, 39.9)
        A.weave(mfma_list(ffn, step), ev)
        if step < 19: A('s_waitcnt lgkmcnt(0)')
    stamp(A, 3)

sW10 = 12
def breg(i): return 112 + 4*i if i < 21 else (4*(i - 21) if i < 49 else 196 + 4*(i - 49))
def obreg(j): return 240 + 4*j if j < 4 else breg(j - 4)
def bload(i):
    u, nb = divmod(i, 5)
    return VM(f'buffer_load_dwordx4 {a(breg(i), 4)}, v{vL16}, {s(sWS, 4)}, s64 offen offset:{(u % 4)*1024} sc1', 'B',
              [f's_add_u32 s64, s{sB+nb}, {(u // 4)*4096}'])
def oload(j):
    u, nb = divmod(j, 5)
    pre = [f's_add_u32 s64, s{sB+nb}, s{sBO}']
    if j < 4: return VM(f'buffer_load_dwordx4 {a(obreg(j), 4)}, v{vL16}, {s(sWS, 4)}, s64 offen sc1', 'B', pre)
    return VM(f'buffer_load_dwordx4 v{vL16}, {s(sWS, 4)}, s64 offen sc1 lds', 'B',
              pre + [f's_add_u32 m0, s{sW10}, {BO + (j - 4)*4096}', f's_add_u32 s64, s64, {u*1024}'])

Z_TXT = lambda r: f'buffer_load_dword v{r+1}, v{r}, {s(sD, 4)}, 0 offen sc1'
def z_issue(r): return [[f'v_and_b32 v{r}, 3, v{vL}', f'v_lshlrev_b32 v{r}, 2, v{r}'], VM(Z_TXT(r), 'z')]
def z_check(r): return lambda A: poll_check(A, [r+1], Z_TXT(r))
E_TXT = [f'buffer_load_dword v{86+k}, v90, {s(sWS, 4)}, s{68+k} offen sc1' for k in range(4)]
_n = [0]
def wave0(body):
    def f(A):
        _n[0] += 1; n = _n[0]
        A(f's_cmp_eq_u32 s{sW}, 0', f's_cbranch_scc0 Lw0_{n}'); body(A); A(f'Lw0_{n}:')
    return f
def e_flag_(A): A('s_lshl_b32 s64, s2, 7', f's_add_u32 s64, s64, {F_E}'); flag_store(A, 's64')
def e_issue(A):
    A(f'v_lshlrev_b32 v90, 7, v{vL}', *[f's_mov_b32 s{68+k}, {F_E + 8192*k}' for k in range(4)])
    wave0(lambda A: A(*E_TXT))(A)
def e_check_(A): poll_check(A, [86, 87, 88, 89], E_TXT)
def covered(tags, by):
    def f(A):
        for t in tags: assert A.vm_after(t) > A.vm_after(by), (t, by)
    return f
def seq(*fs): return lambda A: [f(A) for f in fs]
def add_e(head, preb):
    for st, f in ((C.eF, seq(covered(['st'], f'slab{(C.eF+1)//2}'), wave0(e_flag_))), (C.eP, e_issue)):
        head[st] = seq(head[st], f) if st in head else f
    assert C.eP == 13 and C.eC == 15 or C.eP == 15 and C.eC == 17
    preb[C.eC] = wave0(seq(lambda A: A('s_waitcnt vmcnt(0)') if C.eC == 17 else None, e_check_))

def wq_dma():
    def f(A):
        srd(A, sT, P_WPHI, 32*800)
        A(f's_mul_i32 s64, s{sETA}, 800', 's_mov_b32 s66, m0', f's_mov_b32 m0, {SP}', 's_mov_b32 exec_hi, 0x3ffff')
        A.vmem(f'buffer_load_dwordx4 v{vL16}, {s(sT, 4)}, s64 offen lds', 'wq')
        A('s_mov_b32 exec_hi, -1', 's_mov_b32 m0, s66')
    return [f]
def wq_build(t):
    ad = t + 8; mk = t + 9
    pre = [f's_mov_b32 s64, {SP}', f'v_bfe_u32 v2, v{vL}, 2, 2', f'v_mul_u32_u24 v2, 10, v2', f'v_lshrrev_b32 v3, 4, v{vL}', f'v_mul_u32_u24 v4, 320, v3',
           f'v_add3_u32 v2, v2, v4, s64', f'v_and_b32 v4, 3, v{vL}', f'v_lshl_add_u32 v{ad}, v4, 1, v2', f'v_add_u32 v{mk}, 8, v2']
    r0 = [f'ds_read_u16 v{t+e}, v{ad} offset:{40*e}' for e in range(8)]
    p0 = [f'v_lshl_or_b32 v{vWQ+j}, v{t+2*j+1}, 16, v{t+2*j}' for j in range(4)]
    r1 = [f'ds_read_u16 v{t+e}, v{mk} offset:{40*e}' for e in range(8)]
    p1 = [f'v_lshl_or_b32 v{vWQ+4+j}, v{t+2*j+1}, 16, v{t+2*j}' for j in range(4)]
    msk = [f'v_cmp_gt_u32 vcc, 48, v{vL}'] + [f'v_cndmask_b32 v{vWQ+j}, 0, v{vWQ+j}, vcc' for j in (0, 1, 4, 5)] + \
          [f'v_cmp_gt_u32 vcc, 32, v{vL}'] + [f'v_cndmask_b32 v{vWQ+j}, 0, v{vWQ+j}, vcc' for j in (2, 3, 6, 7)]
    return [pre] + r0, p0 + r1, p1 + [msk]

def chop(lst, steps, extra):
    n = len(steps); m = -(-len(lst) // n)
    for k, st in enumerate(steps): extra[st] = extra.get(st, []) + lst[k*m:(k+1)*m]

RTI, RTO = 74, 42
def retile_scalar(A):
    A(f's_mul_i32 s64, s{sY}, 6554', 's_lshr_b32 s64, s64, 16', 's_mul_i32 s65, s64, 10', f's_sub_u32 s65, s{sY}, s65',
      f's_mul_i32 s{sJ1}, s65, {4*68}', f's_add_u32 s{sJ1}, s{sJ1}, s64', f's_lshl_b32 s{sJ1}, s{sJ1}, 10', f's_add_u32 s{sJ1}, s{sJ1}, {WS_BT}',
      f's_mov_b32 s{sT+2}, {640*1280}', 's_mov_b32 s76, 10240', 's_mov_b32 s77, 5120',
      's_cmp_lt_u32 s64, 48', f's_cselect_b32 s{sT}, s{P_W2}, s{P_WO}', f's_cselect_b32 s{sT+1}, s{P_W2+1}, s{P_WO+1}',
      f's_cselect_b32 s{sT+2}, {1536*1280}, s{sT+2}', 's_cselect_b32 s66, 0, 48', 's_cselect_b32 s76, 5120, s76', 's_cselect_b32 s77, 20480, s77',
      f's_mov_b32 s{sT+3}, 0x20000',
      's_sub_u32 s64, s64, s66', f's_mul_i32 s64, s64, {32*1280}', 's_lshl_b32 s65, s65, 7', f's_add_u32 s{sJ0}, s64, s65')
def retile_addr():
    return [[f'v_and_b32 v2, 15, v{vL}', f'v_lshrrev_b32 v3, 4, v{vL}', 'v_mul_u32_u24 v90, s76, v3', 'v_lshl_add_u32 v90, v2, 3, v90'],
            ['v_lshrrev_b32 v4, 2, v2', f'v_mul_u32_u24 v91, {68*1024}, v4', 'v_and_b32 v2, 3, v2', 'v_lshl_add_u32 v2, v3, 4, v2',
             'v_lshl_add_u32 v91, v2, 4, v91']]
def retile_loads():
    return [VM(f'buffer_load_dwordx2 {v(RTI+2*e, 2)}, v90, {s(sT, 4)}, s{sJ0} offen offset:{(e & 3)*1280}', 'rt',
               [f's_add_u32 s{sJ0}, s{sJ0}, s77'] if e == 4 else []) for e in range(8)]
def retile_work():
    out = []
    for c in range(4):
        for e2 in range(4):
            out.append(f'v_perm_b32 v{RTO+4*c+e2}, v{RTI+4*e2+2+(c >> 1)}, v{RTI+4*e2+(c >> 1)}, s{sP0 + (c & 1)}')
        out.append(VM(f'buffer_store_dwordx4 {v(RTO+4*c, 4)}, v91, {s(sWS, 4)}, s{sJ1} offen offset:{64*c} sc1', 'st'))
    return out

def stats_addr():
    return [[f'v_and_b32 v2, 15, v{vL}', f'v_lshrrev_b32 v3, 4, v{vL}', 'v_mul_u32_u24 v92, 1280, v3', 'v_lshl_add_u32 v92, v2, 4, v92',
             f's_mul_i32 s{sJ2}, s{sY}, 5120'],
            ['v_cmp_eq_u32 vcc, 0, v2', f'v_and_b32 v93, 48, v{vL}', f'v_mov_b32 v3, {BIG:#x}', f's_lshl_b32 s{sJ1}, s{sY}, 6',
             'v_cndmask_b32 v93, v3, v93, vcc', f's_add_u32 s{sJ1}, s{sJ1}, {WS_ST}']]
def stats_loads(r):
    return [VM(f'buffer_load_dwordx4 {v(44+20*r+4*u, 4)}, v92, {s(sX, 4)}, s{sJ2} offen offset:{256*u}', f'sx{r}',
               [f's_add_u32 s{sJ2}, s{sJ2}, 5120'] if r and u == 0 else []) for u in range(5)]
def stats_work(r):
    S, Q, t0, t1 = 84, 85, 86, 87
    STI = 44 + 20*r
    o = []
    for k in range(20):
        o += [f'v_lshlrev_b32 v{t0}, 16, v{STI+k}', f'v_and_b32 v{t1}, s78, v{STI+k}']
        if k == 0: o += [f'v_add_f32 v{S}, v{t0}, v{t1}', f'v_mul_f32 v{Q}, v{t0}, v{t0}', f'v_fmac_f32 v{Q}, v{t1}, v{t1}']
        else: o += [f'v_add_f32 v{S}, v{S}, v{t0}', f'v_fmac_f32 v{Q}, v{t0}, v{t0}', f'v_add_f32 v{S}, v{S}, v{t1}', f'v_fmac_f32 v{Q}, v{t1}, v{t1}']
    for k in (8, 4, 2, 1):
        o += [f'v_add_f32_dpp v{S}, v{S}, v{S} row_ror:{k} row_mask:0xf bank_mask:0xf',
              f'v_add_f32_dpp v{Q}, v{Q}, v{Q} row_ror:{k} row_mask:0xf bank_mask:0xf']
    R = STI
    o += [f'v_mul_f32 v{R+1}, 0xbacccccd, v{S}',
          f'v_mul_f32 v{Q}, 0x3acccccd, v{Q}', f'v_fma_f32 v{Q}, -v{R+1}, v{R+1}, v{Q}', f'v_max_f32 v{Q}, 0, v{Q}',
          f'v_add_f32 v{R+3}, 0x3727c5ac, v{Q}', f'v_rsq_f32 v{R}, v{R+3}', f'v_mul_f32 v{R+2}, 0xbfb8aa3b, v{R}',
          VM(f'buffer_store_dwordx4 {v(R, 4)}, v93, {s(sWS, 4)}, s{sJ1} offen offset:{64*r} sc1', 'st')]
    return o

def colsum_scalar(A):
    A(f's_lshr_b32 s64, s{sY}, 3', f's_and_b32 s65, s{sY}, 7',
      's_mul_i32 s75, s65, 19968', 's_lshl_b32 s66, s64, 8', 's_add_u32 s75, s75, s66', f's_add_u32 s75, s75, {WS_CS}',
      's_cmp_lt_u32 s64, 54', f's_cselect_b32 s{sT2}, s{P_W1}, s{P_W3}', f's_cselect_b32 s{sT2+1}, s{P_W1+1}, s{P_W3+1}', 's_cselect_b32 s66, 30, 54',
      's_mov_b32 s72, 3072',
      's_cmp_lt_u32 s64, 30', f's_cselect_b32 s{sT2}, s{P_WQKV}, s{sT2}', f's_cselect_b32 s{sT2+1}, s{P_WQKV+1}, s{sT2+1}',
      's_cselect_b32 s66, 0, s66', 's_cselect_b32 s72, 3840, s72', f's_mov_b32 s{sT2+3}, 0x20000', f's_mul_i32 s{sT2+2}, s72, 640',
      's_sub_u32 s64, s64, s66', 's_lshl_b32 s64, s64, 7', 's_mul_i32 s65, s65, 80', 's_mul_i32 s65, s65, s72', 's_add_u32 s73, s64, s65',
      's_lshl_b32 s74, s72, 3')
def colsum_addr():
    return [[f'v_lshrrev_b32 v2, 3, v{vL}', 'v_mul_u32_u24 v93, s72, v2', f'v_and_b32 v2, 7, v{vL}', 'v_lshl_add_u32 v93, v2, 4, v93',
             f'v_lshrrev_b32 v3, 4, v{vL}', 'v_lshlrev_b32 v94, 5, v2', 'v_lshl_add_u32 v94, v3, 3, v94']]
def colsum_loads():
    return [VM(f'buffer_load_dwordx4 {v(34+4*u, 4)}, v93, {s(sT2, 4)}, s73 offen', f'cs{u // 5}', ['s_add_u32 s73, s73, s74'] if u else []) for u in range(10)]
def colsum_work():
    o = []
    for j in range(4):
        o += [f'v_lshlrev_b32 v2, 16, v{34+j}', f'v_lshlrev_b32 v3, 16, v{38+j}', f'v_and_b32 v4, s78, v{34+j}', f'v_and_b32 v5, s78, v{38+j}',
              f'v_add_f32 v{34+j}, v2, v3', f'v_add_f32 v{38+j}, v4, v5']
    def one(u):
        r = []
        for j in range(4):
            t = 2 + 2*(j & 1)
            r += [f'v_lshlrev_b32 v{t}, 16, v{34+4*u+j}', f'v_and_b32 v{t+1}, s78, v{34+4*u+j}',
                  f'v_add_f32 v{34+j}, v{34+j}, v{t}', f'v_add_f32 v{38+j}, v{38+j}, v{t+1}']
        return r
    p0 = o + one(2) + one(3) + one(4)
    p1 = [x for u in range(5, 10) for x in one(u)]
    cr = lambda c: 34 + (c >> 1) + 4*(c & 1)
    z = [f'v_permlane32_swap_b32 v{cr(c)}, v{cr(c+4)}' for c in range(4)] + [f'v_add_f32 v{cr(c)}, v{cr(c)}, v{cr(c+4)}' for c in range(4)]
    z += [f'v_permlane16_swap_b32 v{cr(c)}, v{cr(c+2)}' for c in range(2)] + [f'v_add_f32 v{36+c}, v{cr(c)}, v{cr(c+2)}' for c in range(2)]
    z += [f'v_add_f32_dpp v{36+c}, v{36+c}, v{36+c} row_ror:8 row_mask:0xf bank_mask:0xf' for c in range(2)]
    z += [VM(f'buffer_store_dwordx2 v[36:37], v94, {s(sWS, 4)}, s75 offen sc1', 'st')]
    return p0, p1, z

def tail_loads(extra, first, sets):
    slot1 = [oload(j) for j in range(4, 13)]; slot2 = [oload(j) for j in range(13, 25)]
    if C.eC == 15:
        l0 = first + slot1 + sets
        n = -(-(len(l0) + len(slot2))*2 // 5)
        chop(l0[:n], [15, 16], extra); chop(slot2 + l0[n:], [17, 18, 19], extra)
    else: chop(first + slot1 + slot2 + sets, [17, 18, 19], extra)

def ffn_role(A):
    A('Lffn:'); A.vm = []
    ST, CS = 34, 74
    head, extra, preb = {}, {}, {}
    h0 = [f's_mul_i32 s{sY}, s{sMT}, 12', f's_add_u32 s{sY}, s{sY}, s{sCT}', f's_lshl_b32 s{sY}, s{sY}, 2', f's_add_u32 s{sY}, s{sY}, s{sW}']
    cl_ = colsum_loads()
    extra[0] = [h0, colsum_scalar] + colsum_addr() + cl_[:5] + [retile_scalar] + retile_addr()
    extra[1] = z_issue(13) + cl_[5:]
    extra[2] = retile_loads()
    head[3] = covered(['cs0'], 'slab2')
    head[5] = seq(covered(['z', 'rt', 'cs1'], 'slab3'), z_check(13))
    p0, p1, z = colsum_work()
    chop(p0[:60], [3, 4], extra)
    chop(p0[60:] + p1[:16] + retile_work() + p1[16:] + z, [5, 6, 7, 8], extra)
    extra[9] = wq_dma()
    add_e(head, preb)
    w0, w1, w2 = wq_build(34)
    extra[14] = w0; extra[15] = list(w1); extra[16] = list(w2)
    head[13] = seq(covered(['wq'], 'slab7'), head[13]) if 13 in head else covered(['wq'], 'slab7')
    ct = [82, 83, 84, 85, 90, 91, 92, 93]
    ld = [[f'v_and_b32 v2, 31, v{vL}', f'v_lshrrev_b32 v3, 5, v{vL}', 'v_mul_u32_u24 v3, 6144, v3', 'v_lshl_add_u32 v5, v2, 2, v3',
           f's_lshl_b32 s65, s{sCT}, 9', f's_lshl_b32 s66, s{sW}, 7', 's_add_u32 s65, s65, s66', f's_add_u32 s65, s65, {WS_CS + 1920*4}']]
    ld += [VM(f'buffer_load_dword v{ct[p]}, v5, {s(sWS, 4)}, s65 offen sc1', 'csl', ['s_add_u32 s65, s65, 19968'] if p else []) for p in range(8)]
    stl = [[f'v_and_b32 v20, 15, v{vL}', 'v_lshlrev_b32 v20, 4, v20', f's_mul_i32 s65, s{sMT}, 2560', f's_add_u32 s65, s65, {WS_ST}']]
    stl += [VM(f'buffer_load_dwordx3 {v(ST+4*tb, 3)}, v20, {s(sWS, 4)}, s65 offen offset:{256*tb+4} sc1', 'stl') for tb in range(10)]
    extra[17] = stl
    csw = [lambda A: A.wait_vm('csl')] + [f'v_add_f32 v82, v82, v{ct[p]}' for p in range(1, 8)]
    csw += [[f's_mul_i32 s65, s{sW}, 768', f's_add_u32 s65, s65, {CSS}', f'v_lshl_add_u32 v2, v{vL}, 2, s65', f'v_and_b32 v3, 48, v{vL}',
             'v_add_u32 v94, s65, v3', 'ds_write_b32 v2, v82']]
    csr = [f'ds_read_b128 {v(CS+4*b, 4)}, v94 offset:{64*b}' for b in range(4)]
    extra[18] = csw; extra[19] = csr
    tail_loads(extra, ld, [oload(j) for j in range(4)] + [bload(i) for i in list(range(21)) + list(range(49, 60))])
    mainloop(A, True, head, extra, preb)
    A(f's_mul_i32 s65, s{sMT}, {10*68}', f's_lshl_b32 s66, s{sCT}, 2', 's_add_u32 s65, s65, s66', f's_add_u32 s65, s65, s{sW}',
      's_lshl_b32 s65, s65, 10')
    A.wait_vm('stl'); A('s_waitcnt lgkmcnt(0)')
    b2 = [bload(i) for i in range(21, 49)]
    T = 22
    for tb in range(10):
        if tb == 8: A(f's_cmp_eq_u32 s{sMT}, 12', 's_cbranch_scc1 Lffn_skip')
        g, u, st = acc(True, tb, 0), acc(True, tb, 2), ST + 4*tb
        O = 30 if tb % 2 == 0 else 16
        o = []
        o += [f'v_pk_fma_f32 {v(g+2*j, 2)}, {v(CS+2*j, 2)}, {v(st, 2)}, {v(g+2*j, 2)} op_sel_hi:[1,0,1]' for j in range(4)]
        o += [f'v_pk_fma_f32 {v(u+2*j, 2)}, {v(CS+8+2*j, 2)}, {v(st, 2)}, {v(u+2*j, 2)} op_sel_hi:[1,0,1]' for j in range(4)]
        o += [f'v_pk_mul_f32 {v(T+2*j, 2)}, {v(g+2*j, 2)}, {v(st, 2)} op_sel:[0,1] op_sel_hi:[1,1]' for j in range(4)]
        o += [f'v_exp_f32 v{T+j}, v{T+j}' for j in range(8)]
        o += [f'v_pk_mul_f32 {v(g+2*j, 2)}, {v(g+2*j, 2)}, {v(u+2*j, 2)}' for j in range(4)]
        o += [f'v_pk_fma_f32 {v(T+2*j, 2)}, {v(T+2*j, 2)}, {v(st+2, 2)}, {v(st+2, 2)} op_sel_hi:[1,0,0]' for j in range(4)]
        o += [f'v_rcp_f32 v{T+j}, v{T+j}' for j in range(8)]
        o += [f'v_pk_mul_f32 {v(g+2*j, 2)}, {v(g+2*j, 2)}, {v(T+2*j, 2)}' for j in range(4)]
        o += [f'v_cvt_pk_bf16_f32 v{O+j}, v{g+2*j}, v{g+2*j+1}' for j in range(4)]
        bl = b2[4*tb:4*tb+4] if tb < 7 and not C.nob else []
        A.weave(o, spread(bl, 2, 40))
        A.vmem(f'buffer_store_dwordx4 {v(O, 4)}, v{vL16}, {s(sWS, 4)}, s65 offen sc1', 'h')
        A(f's_add_u32 s65, s65, {68*1024}')
    A('Lffn_skip:')
    A(f's_mul_i32 s65, s{sMT}, 48', f's_lshl_b32 s66, s{sCT}, 2', 's_add_u32 s65, s65, s66', f's_add_u32 s65, s65, s{sW}', 's_lshl_b32 s65, s65, 7',
      f's_add_u32 s65, s65, {F_H}')
    stamp(A, 4)
    A('s_waitcnt vmcnt(0)'); flag_store(A, 's65')
    if C.nob:
        for f in b2: f(A)
    A('s_branch Lcommon')

WPA = 196
def qkv_role(A, isq):
    A('Lq:' if isq else 'Lkv:'); A.vm = []
    ST, CS = 34, 42
    head, extra, preb = {}, {}, {}
    if isq:
        h0 = [f's_lshl_b32 s{sY}, s{sMT}, 2', f's_add_u32 s{sY}, s{sY}, s{sCT}', f's_lshl_b32 s{sY}, s{sY}, 2', f's_add_u32 s{sY}, s{sY}, s{sW}',
              f's_lshl_b32 s{sY}, s{sY}, 1', f's_add_u32 s{sY}, s{sY}, 256']
        extra[0] = [h0] + stats_addr() + stats_loads(0)
        extra[1] = z_issue(90) + stats_loads(1)
        head[3] = covered(['sx0'], 'slab2')
        head[5] = seq(covered(['z', 'sx1'], 'slab3'), z_check(90))
        w_0, w_1 = stats_work(0), stats_work(1)
        chop(w_0[:92], [3, 4], extra); chop(w_0[92:] + w_1, [5, 6, 7, 8], extra)
        extra[9] = wq_dma()
    else:
        h0 = [f's_lshl_b32 s{sY}, s{sMT}, 3', f's_add_u32 s{sY}, s{sY}, s{sCT}', f's_lshl_b32 s{sY}, s{sY}, 2', f's_add_u32 s{sY}, s{sY}, s{sW}']
        def wk_dma(A):
            srd(A, sT, P_WPHI, 32*800)
            A(f's_lshl_b32 s64, s{sCT}, 2', f's_add_u32 s64, s64, s{sW}', 's_mul_i32 s64, s64, 800',
              f's_mul_i32 s65, s{sW}, 800', 's_mov_b32 s66, m0', f's_add_u32 m0, s65, {SP}',
              'v_mov_b32 v34, 0', 'v_mov_b32 v35, 0', 'v_mov_b32 v36, 0', 'v_mov_b32 v37, 0', f'v_add_u32 v2, {SP+3200}, v{vL16}',
              's_mov_b32 exec_hi, 0x3ffff')
            A.vmem(f'buffer_load_dwordx4 v{vL16}, {s(sT, 4)}, s64 offen lds', 'wk')
            A('ds_write_b128 v2, v[34:37]', 's_mov_b32 exec_hi, -1', 's_mov_b32 m0, s66')
        extra[0] = [h0] + stats_addr() + [wk_dma]
        extra[1] = z_issue(90) + stats_loads(0)
        head[3] = covered(['wk'], 'slab2')
        head[5] = seq(covered(['z', 'sx0'], 'slab3'), z_check(90))
        wk = [[f'v_lshrrev_b32 v2, 4, v{vL}', f'v_and_b32 v3, 3, v{vL}', 'v_cmp_eq_u32 vcc, v2, v3', 'v_mul_u32_u24 v2, 800, v2',
               'v_mov_b32 v3, 3200', f'v_bfe_u32 v4, v{vL}, 2, 2', 'v_cndmask_b32 v2, v3, v2, vcc', 'v_mul_u32_u24 v4, 40, v4',
               f's_mov_b32 s64, {SP}', 'v_add3_u32 v34, v2, v4, s64']]
        for b in range(5):
            for sg in range(3):
                for j in range(2):
                    r = WPA + 4*(3*b + sg) + 2*j
                    if sg == 2 and j == 1: wk += [f'v_accvgpr_write_b32 a{r}, 0', f'v_accvgpr_write_b32 a{r+1}, 0']
                    else: wk.append(f'ds_read_b64_tr_b16 {a(r, 2)}, v34 offset:{(8*sg + 4*j)*40 + 8*b}')
        chop(wk, [3, 4], extra)
        chop(stats_work(0), [5, 6, 7, 8], extra)
        extra[9] = wq_dma()
    add_e(head, preb)
    head[13] = seq(covered(['wq'], 'slab7'), head[13]) if 13 in head else covered(['wq'], 'slab7')
    w0, w1, w2 = wq_build(34)
    extra[14] = w0; extra[15] = list(w1); extra[16] = list(w2)
    ld = [[f'v_min_u32 v2, 39, v{vL}', 'v_cmp_lt_u32 vcc, 19, v2', 'v_lshlrev_b32 v91, 4, v2', f's_mul_i32 s65, s{sCT}, {640 if isq else 320}',
           f'v_add_u32 v3, {0 if isq else 2240}, v91', f's_add_u32 s65, s65, {WS_CS + (0 if isq else 2560)}', 'v_cndmask_b32 v5, v91, v3, vcc']]
    ld += [VM(f'buffer_load_dwordx4 {v(44+4*p, 4)}, v5, {s(sWS, 4)}, s65 offen sc1', 'csl', ['s_add_u32 s65, s65, 19968'] if p else []) for p in range(8)]
    stl = [[f'v_and_b32 v20, 15, v{vL}', 'v_lshlrev_b32 v20, 4, v20', f's_lshl_b32 s65, s{sMT}, 12', f's_add_u32 s65, s65, s{sW10}',
            f's_add_u32 s65, s65, {WS_ST}']]
    stl += [VM(f'buffer_load_dwordx2 {v(ST+2*tb, 2)}, v20, {s(sWS, 4)}, s65 offen offset:{256*tb} sc1', 'stl') for tb in range(4)]
    extra[17] = stl
    csw = [lambda A: A.wait_vm('csl')]
    csw += [f'v_add_f32 v{82+j}, v{44+j}, v{48+j}' for j in range(4)]
    csw += [f'v_add_f32 v{82+j}, v{82+j}, v{44+4*p+j}' for p in range(2, 8) for j in range(4)]
    csw += [[f's_mul_i32 s65, s{sW}, 768', f's_add_u32 s65, s65, {CSS}', 'v_add_u32 v2, s65, v91', f'v_lshrrev_b32 v3, 4, v{vL}',
             'v_mul_u32_u24 v3, 80, v3', 'v_add_u32 v94, s65, v3', 'ds_write_b128 v2, v[82:85]']]
    extra[18] = csw
    extra[19] = [f'ds_read_b128 {v(CS+4*b, 4)}, v94 offset:{(b // 5)*320 + (b % 5)*16}' for b in range(10)]
    b3 = [oload(j) for j in range(4)] + [bload(i) for i in range(49, 60)]
    tail_loads(extra, ld, [bload(i) for i in range(21)] + (b3 if isq else []))
    mainloop(A, False, head, extra, preb)
    A.wait_vm('stl'); A('s_waitcnt lgkmcnt(0)')
    def conv(tb, grp, O):
        o = []; st = ST + 2*tb
        rr = [(acc(False, tb, 5*grp) + 2*j, CS + 20*grp + 2*j) for j in range(10)]
        o += [f'v_pk_fma_f32 {v(r, 2)}, {v(c, 2)}, {v(st, 2)}, {v(r, 2)} op_sel:[0,1,0] op_sel_hi:[1,1,1]' for r, c in rr]
        o += [f'v_pk_mul_f32 {v(r, 2)}, {v(r, 2)}, {v(st, 2)} op_sel_hi:[1,0]' for r, c in rr]
        o += [f'v_cvt_pk_bf16_f32 v{O+j}, v{r}, v{r+1}' for j, (r, c) in enumerate(rr)]
        return o
    b2 = [bload(i) for i in range(21, 49)]
    if isq:
        A(f'v_and_b32 v2, 15, v{vL}', f'v_lshrrev_b32 v3, 4, v{vL}', f'v_mul_u32_u24 v3, {QP}, v3', 'v_lshl_add_u32 v20, v2, 4, v3', 'v_lshl_add_u32 v19, v2, 3, v3',
          f's_lshl_b32 s65, s{sMT}, 2', f's_add_u32 s65, s65, s{sCT}', f's_mul_i32 s66, s65, {8*QP}', f's_add_u32 s66, s66, {WS_Q}',
          f's_lshr_b32 s67, s{sW10}, 1', 's_add_u32 s67, s67, s66', f's_add_u32 s66, s66, s{sW10}')
        for k in range(6): A(f's_add_u32 s{68+k}, s{67 if k % 3 == 2 else 66}, {(k // 3)*4*QP + (k % 3)*4096}')
        A('s_lshl_b32 s65, s65, 2', f's_add_u32 s65, s65, s{sW}', 's_lshl_b32 s65, s65, 7', f's_add_u32 s65, s65, {F_Q}')
        for tb in range(4):
            for grp in range(2):
                O = 22 if grp == 0 else 82
                A(*conv(tb, grp, O))
                for pc in range(2):
                    A.vmem(f'buffer_store_dwordx4 {v(O+4*pc, 4)}, v20, {s(sWS, 4)}, s{68+3*grp+pc} offen offset:{256*tb} sc1', 'q')
                A.vmem(f'buffer_store_dwordx2 {v(O+8, 2)}, v19, {s(sWS, 4)}, s{70+3*grp} offen offset:{128*tb} sc1', 'q')
        stamp(A, 4)
        for f in b2[:8]: f(A)
        A.wait_vm('q'); flag_store(A, 's65')
        for f in b2[8:]: f(A)
        A('s_branch Lcommon')
        return
    KB, VB = 22, 82
    A(f'v_mov_b32 v{KB+10}, 0', f'v_mov_b32 v{KB+11}, 0', f'v_mov_b32 v{VB+10}, 0x3f80', f'v_mov_b32 v{VB+11}, 0',
      f'v_and_b32 v2, 15, v{vL}', f'v_mul_u32_u24 v2, {IMG}, v2', f'v_lshrrev_b32 v3, 4, v{vL}', 'v_lshl_add_u32 v2, v3, 7, v2',
      f's_mul_i32 s65, s{sW}, {32*IMG}', 'v_add_u32 v20, s65, v2')
    A(f'v_bfe_u32 v2, v{vL}, 2, 2', 'v_and_b32 v4, 1, v3', 'v_lshl_add_u32 v2, v4, 2, v2', 'v_lshrrev_b32 v4, 1, v3', 'v_lshl_add_u32 v2, v2, 1, v4',
      f'v_mul_u32_u24 v2, {IMG}, v2', f'v_and_b32 v4, 3, v{vL}', 'v_lshl_add_u32 v2, v4, 3, v2', f's_lshl_b32 s65, s{sW}, 7', 'v_add_u32 v94, s65, v2')
    KA = 140
    def kvr(sg, F):
        return [f'ds_read_b64_tr_b16 {v(F + 4*f + 2*j, 2)}, v94 offset:{(32*sg + 16*j)*IMG + cb}' for f, cb in enumerate((0, 32, 64, 80, 112)) for j in range(2)]
    def kvm(F, first):
        return [MF(v(KA + 4*(2*b+db), 4), v(F+4*b, 4), v(F+12+4*db, 4), 0 if first else v(KA + 4*(2*b+db), 4)) for b in range(3) for db in range(2)]
    for tb in range(4):
        P = acc(False, tb, 0); N = acc(False, tb, 5); io = (tb & 1)*16*IMG
        c0 = conv(tb, 0, KB)
        A.weave(c0, spread(kvr(0, 96) + kvr(1, 116), 0, 28) if tb == 2 else [])
        A(*[MF(v(P+4*b, 4), a(WPA + 4*(3*b+sg), 4), v(KB+4*sg, 4), 0 if sg == 0 else v(P+4*b, 4)) for sg in range(3) for b in range(5)])
        A(*conv(tb, 1, VB))
        vw = [f'ds_write_b128 v20, {v(VB+4*j, 4)} offset:{io + 80 + 16*j}' for j in range(3)]
        if tb != 2: A(*vw)
        mx, mn = 2, 3
        o = [f'v_max3_f32 v{mx}, v{P}, v{P+1}, v{P+2}', f'v_min3_f32 v{mn}, v{P}, v{P+1}, v{P+2}']
        for j in range(3, 19, 2): o += [f'v_max3_f32 v{mx}, v{mx}, v{P+j}, v{P+j+1}', f'v_min3_f32 v{mn}, v{mn}, v{P+j}, v{P+j+1}']
        o += [f'v_max_f32 v{mx}, v{mx}, v{P+19}', f'v_min_f32 v{mn}, v{mn}, v{P+19}',
              f'v_mul_f32 v{mx}, 0xbfb8aa3b, v{mx}', f'v_mul_f32 v{mn}, {LOG2E}, v{mn}']
        o += [f'v_pk_fma_f32 {v(N+2*j, 2)}, {v(P+2*j, 2)}, {s(sL, 2)}, {v(2, 2)} op_sel:[0,0,1] op_sel_hi:[1,1,1] neg_lo:[0,1,0] neg_hi:[0,1,0]' for j in range(10)]
        o += [f'v_pk_fma_f32 {v(P+2*j, 2)}, {v(P+2*j, 2)}, {s(sL, 2)}, {v(2, 2)} op_sel_hi:[1,1,0]' for j in range(10)]
        bl = (b2[10*tb:10*tb+10] if tb < 3 else b3) if not C.nob else []
        A.weave(o, spread(bl[:3], 2, 40))
        e0 = [f'v_exp_f32 v{P+j}, v{P+j}' for j in range(20)]; e1 = [f'v_exp_f32 v{N+j}, v{N+j}' for j in range(20)]
        if tb == 2:
            A('s_waitcnt lgkmcnt(0)')
            A.weave(e0, spread(kvm(96, True), 0, 6) + spread(kvr(2, 96), 7, 13) + spread(kvm(116, False), 7, 13) + spread(kvr(3, 116), 14, 19))
            A('s_waitcnt lgkmcnt(0)', 's_barrier')
            A.weave(e1, spread(kvm(96, False) + kvm(116, False), 0, 14) + spread(vw, 2, 12) + spread(bl[3:6], 3, 19))
        else:
            A.weave(e0 + e1, spread(bl[3:6], 3, 39))
        o = [f'v_pk_add_f32 v[2:3], {v(P, 2)}, {v(P+2, 2)}', f'v_pk_add_f32 v[4:5], {v(N, 2)}, {v(N+2, 2)}']
        for j in range(2, 10): o += [f'v_pk_add_f32 v[2:3], v[2:3], {v(P+2*j, 2)}', f'v_pk_add_f32 v[4:5], v[4:5], {v(N+2*j, 2)}']
        o += ['v_add_f32 v2, v2, v3', 'v_add_f32 v4, v4, v5', 'v_rcp_f32 v2, v2', 'v_rcp_f32 v3, v4']
        o += [f'v_pk_mul_f32 {v(P+2*j, 2)}, {v(P+2*j, 2)}, v[2:3] op_sel_hi:[1,0]' for j in range(10)]
        o += [f'v_pk_mul_f32 {v(N+2*j, 2)}, {v(N+2*j, 2)}, v[2:3] op_sel:[0,1] op_sel_hi:[1,1]' for j in range(10)]
        sq = [r for q in range(4) for r in [P+5*q+j for j in range(5)] + [N+5*q+j for j in range(5)]]
        OUT = [16, 22, 26, 82, 86]
        for pc in range(5):
            o += [f'v_cvt_pk_bf16_f32 v{OUT[pc]+j}, v{sq[8*pc+2*j]}, v{sq[8*pc+2*j+1]}' for j in range(4)]
            o += [f'ds_write_b128 v20, {v(OUT[pc], 4)} offset:{io + 16*pc}']
        A.weave(o, spread(bl[6:], 2, 40))
        if tb == 1: A('s_waitcnt lgkmcnt(0)', 's_barrier')
    stamp(A, 4)
    A(f'v_lshrrev_b32 v2, 4, v{vL}', f'v_and_b32 v3, 15, v{vL}', 'v_mul_u32_u24 v4, 21, v2', 'v_add_lshl_u32 v34, v4, v3, 4', 'v_add_u32 v35, 256, v34', f'v_mov_b32 v5, {BIG:#x}',
      'v_cmp_gt_u32 vcc, 5, v3', 'v_cndmask_b32 v35, v5, v35, vcc', f'v_cmp_gt_u32 vcc, 32, v{vL}',
      'v_cndmask_b32 v36, v5, v34, vcc', 'v_cndmask_b32 v37, v5, v35, vcc',
      f's_lshl_b32 s65, s{sCT}, 2', f's_add_u32 s65, s65, s{sW}', 's_lshl_b32 s65, s65, 3', f's_add_u32 s65, s65, s{sMT}',
      f's_mul_i32 s66, s65, {KVP}', f's_add_u32 s66, s66, {WS_KV}', 's_lshl_b32 s65, s65, 7', f's_add_u32 s65, s65, {F_KV}')
    A('s_waitcnt lgkmcnt(0)', 's_barrier')
    R = [x for sg in range(4) for x in kvr(sg, 176 + 20*sg)]
    A(*R[:15])
    for sg in range(4):
        nxt = R[15+10*sg:25+10*sg]
        A(f's_waitcnt lgkmcnt({5 if sg < 3 else 0})')
        A.weave(kvm(176 + 20*sg, False), spread(nxt, 0, 5))
    for b in range(3):
        for db in range(2):
            A.vmem(f'buffer_store_dwordx4 {v(KA + 4*(2*b+db), 4)}, v{34 + db + (2 if b == 2 else 0)}, {s(sWS, 4)}, s66 offen offset:{1344*b} sc1', 'kv')
    A('s_waitcnt vmcnt(0)'); flag_store(A, 's65')
    if C.nob:
        for f in b2 + b3: f(A)
    A('s_branch Lcommon')

def spare_role(A):
    A('Lspare:'); A.vm = []
    A('s_waitcnt lgkmcnt(0)')
    common_consts(A)
    A('s_sub_u32 s70, s2, 252', 's_lshl_b32 s64, s70, 2', f's_add_u32 s64, s64, s{sW}', f's_add_u32 s{sY}, s64, 624',
      f's_mul_i32 s64, s64, {3*8192}', f's_add_u32 s64, s64, {WS_FL}', f'v_lshlrev_b32 v2, 7, v{vL}', 'v_mov_b32 v34, 0')
    for k in range(3): A(f'buffer_store_dword v34, v2, {s(sWS, 4)}, s64 offen sc1', 's_add_u32 s64, s64, 8192')
    A('s_waitcnt vmcnt(0)', 's_barrier', 's_lshl_b32 s64, s70, 2')
    wave0(lambda A: flag_store(A, 's64', sD))(A)
    A('Lsp_loop:')
    retile_scalar(A); A.run(retile_addr())
    for f in retile_loads(): f(A)
    A('s_waitcnt vmcnt(0)')
    A.run(retile_work())
    A(f's_add_u32 s{sY}, s{sY}, 16', f's_cmp_lt_u32 s{sY}, 680', 's_cbranch_scc1 Lsp_loop')
    A.run(wq_dma()); A.run(z_issue(13))
    A('s_waitcnt vmcnt(0)', 's_barrier')
    z_check(13)(A)
    wave0(e_flag_)(A)
    for part in wq_build(34): A.run(part); A('s_waitcnt lgkmcnt(0)')
    e_issue(A); A('s_waitcnt vmcnt(0)'); wave0(e_check_)(A)
    A('s_barrier')
    for i in range(60): bload(i)(A)
    for j in range(25): oload(j)(A)

AB, AC2, PHI = 96, 176, 22
def aload(u, tb):
    r = AB + 16*(u % 5) + 4*tb
    k = u if u < 12 else u - 12
    return VM(f'buffer_load_dwordx4 {v(r, 4)}, v{vL16}, {s(sWS, 4)}, s64 offen offset:{(k % 4)*1024} sc1', f'A{u}',
              [f's_add_u32 s64, s{sA+tb}, {(k // 4)*4096}'])

def common(A):
    A('Lcommon:'); A.vm = []
    stamp(A, 5)
    A(f's_lshl_b32 s64, s{sMO}, 2', f's_lshr_b32 s65, s{sETA}, 3', 's_add_u32 s64, s64, s65', 's_lshl_b32 s64, s64, 2', f's_add_u32 s64, s64, s{sW}',
      's_lshl_b32 s64, s64, 7', f's_add_u32 s{sJ0}, s64, {F_Q}', 'v_mov_b32 v4, 0')
    Q_TXT = f'buffer_load_dword v87, v4, {s(sWS, 4)}, s{sJ0} offen sc1'
    A.vmem(Q_TXT, 'qp')
    A(f's_mul_i32 s64, s{sM2}, 52429', 's_lshr_b32 s64, s64, 17',
      f's_lshl_b32 s65, s{sM2}, 6', 's_add_u32 s65, s65, 63', 's_mul_i32 s65, s65, 52429', 's_lshr_b32 s65, s65, 23',
      's_sub_u32 s65, s65, s64', f's_mul_i32 s65, s65, {48*8}', 's_mul_i32 s64, s64, 48', f's_mul_i32 s66, s{sW}, 12', 's_add_u32 s64, s64, s66',
      's_lshl_b32 s64, s64, 7', f's_add_u32 s{sJ1}, s64, {F_H}',
      f'v_and_b32 v2, 15, v{vL}', 'v_min_u32 v2, 11, v2', f'v_and_b32 v3, 16, v{vL}', 'v_mul_u32_u24 v3, s65, v3', 'v_lshl_add_u32 v84, v2, 7, v3')
    H_TXT = f'buffer_load_dword v86, v84, {s(sWS, 4)}, s{sJ1} offen sc1'
    A.vmem(H_TXT, 'hp')
    A('v_mov_b32 v34, 0', 'v_mov_b32 v35, 0', 'v_mov_b32 v36, 0', 'v_mov_b32 v37, 0', 'v_min_u32 v2, 188, v0', 'v_lshlrev_b32 v2, 4, v2',
      f'v_add_u32 v2, {KVB}, v2', 'ds_write_b128 v2, v[34:37]')
    A(f'v_lshrrev_b32 v2, 4, v{vL}', f'v_and_b32 v3, 15, v{vL}', f's_lshl_b32 s64, s{sW}, 6', 'v_add_u32 v3, s64, v3',
      'v_cmp_eq_u32 vcc, 1, v2', 'v_lshlrev_b32 v5, 4, v3', 'v_cndmask_b32 v16, 0, 1, vcc', 'v_lshl_add_u32 v5, v16, 12, v5',
      'v_cmp_eq_u32 vcc, 2, v2', 'v_lshlrev_b32 v3, 3, v3', 'v_add_u32 v3, 8192, v3', 'v_mov_b32 v16, 256', 'v_mov_b32 v17, 128',
      'v_cndmask_b32 v88, v5, v3, vcc', 'v_cndmask_b32 v16, v16, v17, vcc', 's_mov_b64 s[70:71], vcc',
      'v_add_u32 v89, v88, v16', 'v_add_u32 v90, v89, v16', 'v_add_u32 v91, v90, v16',
      f's_lshl_b32 s64, s{sMO}, 5', f's_add_u32 s64, s64, s{sETA}', f's_mul_i32 s64, s64, {QP}', f's_add_u32 s{sJ2}, s64, {WS_Q}')
    A('s_waitcnt vmcnt(0)'); poll_check(A, [87], Q_TXT)
    stamp(A, 6)
    QF = 34
    for tb in range(4): A.vmem(f'buffer_load_dwordx4 {v(QF+4*tb, 4)}, v{88+tb}, {s(sWS, 4)}, s{sJ2} offen sc1', 'q')
    A('s_mov_b32 s78, 0', 'v_cmp_eq_u32 vcc, 0, v86', 's_cbranch_vccnz Lnoearly')
    keep = list(A.vm)
    for u in range(5):
        for tb in range(4): aload(u, tb)(A)
    A.vm = keep
    A('s_mov_b32 s78, 1', 's_waitcnt vmcnt(20)', 's_branch Learly', 'Lnoearly:', 's_waitcnt vmcnt(0)', 'Learly:')
    p = lambda tb: [50+4*tb, 51+4*tb, 52+4*tb, 53+4*tb, 66+4*tb]
    n_ = lambda tb: [67+4*tb, 68+4*tb, 69+4*tb, 86+2*tb, 87+2*tb]
    R = range(4)
    A(*[f'v_cndmask_b32 v{QF+4*t+j}, v{QF+4*t+j}, 0, s[70:71]' for t in R for j in (2, 3)])
    for tb in R: A(MF(v(50+4*tb, 4), v(vWQ, 4), v(QF+4*tb, 4), 0), MF(v(66+4*tb, 4), v(vWQ+4, 4), v(QF+4*tb, 4), 0))
    x_, y_ = (lambda tb: 34+4*tb), (lambda tb: 35+4*tb)
    def allred(op):
        A(*[f'v_permlane32_swap_b32 v{x_(t)}, v{y_(t)}' for t in R]); A(*[f'{op} v{x_(t)}, v{x_(t)}, v{y_(t)}' for t in R])
        A(*[f'v_mov_b32 v{y_(t)}, v{x_(t)}' for t in R]); A(*[f'v_permlane16_swap_b32 v{x_(t)}, v{y_(t)}' for t in R])
        A(*[f'{op} v{x_(t)}, v{x_(t)}, v{y_(t)}' for t in R]); A(*[f'v_mov_b32 v{y_(t)}, v{x_(t)}' for t in R])
        A(*[f'v_permlane32_swap_b32 v{x_(t)}, v{y_(t)}' for t in R])
    A(*[f'v_max3_f32 v{x_(t)}, v{p(t)[0]}, v{p(t)[1]}, v{p(t)[2]}' for t in R])
    A(*[f'v_max3_f32 v{y_(t)}, -v{p(t)[0]}, -v{p(t)[1]}, -v{p(t)[2]}' for t in R])
    A(*[f'v_max3_f32 v{x_(t)}, v{x_(t)}, v{p(t)[3]}, v{p(t)[4]}' for t in R])
    A(*[f'v_max3_f32 v{y_(t)}, v{y_(t)}, -v{p(t)[3]}, -v{p(t)[4]}' for t in R])
    allred('v_max_f32')
    A(*[f'v_pk_mul_f32 {v(x_(t), 2)}, {v(x_(t), 2)}, {s(sL, 2)} neg_lo:[0,1] neg_hi:[0,1]' for t in R])
    for t in R:
        A(*[f'v_fma_f32 v{n_(t)[j]}, -v{p(t)[j]}, s{sL}, v{y_(t)}' for j in range(5)])
        A(*[f'v_pk_fma_f32 {v(p(t)[j], 2)}, {v(p(t)[j], 2)}, {s(sL, 2)}, {v(x_(t), 2)} op_sel_hi:[1,1,0]' for j in (0, 2)], f'v_fma_f32 v{p(t)[4]}, v{p(t)[4]}, s{sL}, v{x_(t)}')
    for t in R: A(*[f'v_exp_f32 v{r}, v{r}' for r in p(t) + n_(t)])
    A(*[f'v_add_f32 v{x_(t)}, v{p(t)[0]}, v{p(t)[1]}' for t in R]); A(*[f'v_add_f32 v{y_(t)}, v{n_(t)[0]}, v{n_(t)[1]}' for t in R])
    for j in range(2, 5):
        A(*[f'v_add_f32 v{x_(t)}, v{x_(t)}, v{p(t)[j]}' for t in R]); A(*[f'v_add_f32 v{y_(t)}, v{y_(t)}, v{n_(t)[j]}' for t in R])
    allred('v_add_f32')
    A(*[f'v_rcp_f32 v{x_(t)}, v{x_(t)}' for t in R]); A(*[f'v_rcp_f32 v{y_(t)}, v{y_(t)}' for t in R])
    for t in R:
        A(*[f'v_pk_mul_f32 {v(p(t)[j], 2)}, {v(p(t)[j], 2)}, {v(x_(t), 2)} op_sel_hi:[1,0]' for j in (0, 2)], f'v_mul_f32 v{p(t)[4]}, v{p(t)[4]}, v{x_(t)}',
          f'v_mul_f32 v{n_(t)[0]}, v{n_(t)[0]}, v{y_(t)}',
          *[f'v_pk_mul_f32 {v(n_(t)[j], 2)}, {v(n_(t)[j], 2)}, {v(x_(t), 2)} op_sel:[0,1] op_sel_hi:[1,1]' for j in (1, 3)])
    for t in R:
        sq = p(t) + n_(t)
        A(*[f'v_cvt_pk_bf16_f32 v{PHI+6*t+j}, v{sq[2*j]}, v{sq[2*j+1]}' for j in range(5)], f'v_mov_b32 v{PHI+6*t+5}, 0')
    A(f'v_mov_b32 v{PHI+24}, 0', f'v_mov_b32 v{PHI+25}, 0')
    stamp(A, 7)
    A('s_cmp_eq_u32 s78, 1', 's_cbranch_scc1 Lhave_a')
    keep = list(A.vm)
    poll_block(A, [2], f'buffer_load_dword v2, v84, {s(sWS, 4)}, s{sJ1} offen sc1')
    A.vm = keep
    for u in range(5):
        for tb in range(4): aload(u, tb)(A)
    A('Lhave_a:')
    stamp(A, 8)
    A('v_min_u32 v2, 209, v0', 'v_lshlrev_b32 v85, 4, v2', 'v_mul_u32_u24 v3, 3121, v2', 'v_lshrrev_b32 v3, 16, v3',
      'v_mul_u32_u24 v5, 21, v3', 'v_sub_u32 v2, v2, v5', f'v_mul_u32_u24 v2, {KVBP}, v2', f'v_add_u32 v2, {KVB}, v2')
    for k in range(2):
        A(f'v_lshl_add_u32 v5, v3, 2, {2*k}', 'v_mul_u32_u24 v16, 6554, v5', 'v_lshrrev_b32 v16, 16, v16', 'v_mul_u32_u24 v16, 12, v16',
          'v_lshl_add_u32 v5, v5, 1, v16', f'v_add_u32 v{86+k}, v2, v5')
    A(f's_and_b32 s64, s{sETA}, 1', 's_lshl_b32 s65, s64, 2', 's_lshl_b32 s66, s64, 4', 's_sub_u32 s66, 16, s66', f's_mul_i32 s67, s{sETA}, 20')
    def d0(dst, g): A(f'v_cmp_gt_u32 vcc, 2, v{g}', f'v_lshl_add_u32 v{dst}, v{g}, 3, s65', 'v_mov_b32 v17, s66', f'v_cndmask_b32 v{dst}, v17, v{dst}, vcc')
    A(f'v_lshrrev_b32 v2, 4, v{vL}', f'v_bfe_u32 v3, v{vL}, 2, 2')
    d0(5, 3)
    A(f'v_and_b32 v16, 3, v{vL}', 'v_add_u32 v5, v5, v16', f'v_mul_u32_u24 v5, {KVBP}, v5', 'v_lshl_add_u32 v16, v2, 5, v5', f'v_add_u32 v88, {KVB}, v16',
      f'v_add_u32 v16, {4*KVBP}, v88', 'v_cndmask_b32 v89, v88, v16, vcc', f'v_lshlrev_b32 v16, 5, v2', f'v_add_u32 v90, {KVB + 20*KVBP}, v16')
    d0(5, 2)
    A('v_add_u32 v5, s67, v5', 'v_lshrrev_b32 v16, 5, v5', 'v_lshlrev_b32 v16, 10, v16', 'v_bfe_u32 v17, v5, 3, 2', 'v_lshl_add_u32 v16, v17, 8, v16',
      'v_bfe_u32 v17, v5, 2, 1', 'v_lshl_add_u32 v16, v17, 3, v16', f'v_and_b32 v17, 15, v{vL}', 'v_lshl_add_u32 v16, v17, 4, v16',
      f'v_mov_b32 v3, {BIG:#x}', 'v_cndmask_b32 v91, v3, v16, vcc', 'v_cmp_eq_u32 vcc, 2, v2', f'v_and_b32 v93, 7, v{vL}', 'v_cndmask_b32 v92, v3, v16, vcc',
      'v_lshlrev_b32 v93, 7, v93', f's_add_u32 s64, s{sW10}, {BO}', f'v_add_u32 v16, s64, v{vL16}', 'v_add_u32 v17, 0x10000, v16')
    A(f's_lshl_b32 s64, s{sETA}, 10', f's_add_u32 s72, s64, {F_KV}',
      f's_mul_i32 s64, s{sETA}, {8*KVP}', f's_add_u32 s73, s64, {WS_KV}',
      f's_lshl_b32 s64, s{sMO}, 2', f's_add_u32 s64, s64, s{sW}', f's_mul_i32 s74, s64, {4*68*1024}', f's_add_u32 s74, s74, {48*1024}',
      's_lshl_b32 s64, s64, 5', f's_add_u32 s64, s64, s{sETA}', 's_lshl_b32 s64, s64, 7', f's_add_u32 s75, s64, {F_O}',
      f's_lshl_b32 s64, s{sM2}, 12', f's_add_u32 s64, s64, s{sW10}', f's_add_u32 s79, s64, {F_O}')
    KV_TXT = f'buffer_load_dword v84, v93, {s(sWS, 4)}, s72 offen sc1'
    O_TXT = f'buffer_load_dword v84, v93, {s(sWS, 4)}, s79 offen sc1'
    def hstep(u, fill):
        A.wait_vm(f'A{u}')
        mf = [MF(v(AC2 + 20*tb + 4*nb, 4), a(breg(5*u+nb), 4), v(AB + 16*(u % 5) + 4*tb, 4), 0 if u == 0 else v(AC2 + 20*tb + 4*nb, 4))
              for tb in range(4) for nb in (range(5) if tb % 2 == 0 else range(4, -1, -1))]
        ev = list(fill)
        if u + 5 < 12: ev += [(5*tb + 5, aload(u + 5, tb)) for tb in range(4)]
        if 1 <= u <= 5:
            ev += spread([f'ds_read_b128 {a(breg(i), 4)}, v{16 + (i >> 4)} offset:{(i & 15)*4096}' for i in range(5*(u-1), min(5*u, 21))], 1, 19)
        A.weave(mf, ev)
    hstep(0, []); hstep(1, []); hstep(2, [])
    hstep(3, [(0, VM(KV_TXT, 'kvp'))])
    hstep(4, []); hstep(5, [])
    A.wait_vm('kvp'); poll_check(A, [84], KV_TXT)
    stamp(A, 9)
    KP = 48
    kl = [VM(f'buffer_load_dwordx4 {v(KP+4*m, 4)}, v85, {s(sWS, 4)}, s73 offen sc1', 'kp', [f's_add_u32 s73, s73, {KVP}'] if m else []) for m in range(8)]
    A.run(kl)
    hstep(6, [])
    A(*[f's_add_u32 s{sA+k}, s{sA+k}, s{sBO}' for k in range(4)])
    A.wait_vm('kp')
    A(*[f'v_pk_add_f32 {v(KP+2*j, 2)}, {v(KP+2*j, 2)}, {v(KP+16+2*j, 2)}' for j in range(8)])
    A(*[f'v_pk_add_f32 {v(KP+2*j, 2)}, {v(KP+2*j, 2)}, {v(KP+8+2*j, 2)}' for j in range(4)])
    A(*[f'v_pk_add_f32 {v(KP+2*j, 2)}, {v(KP+2*j, 2)}, {v(KP+4+2*j, 2)}' for j in range(2)])
    A(f'v_cvt_pk_bf16_f32 v2, v{KP}, v{KP+1}', f'v_cvt_pk_bf16_f32 v3, v{KP+2}, v{KP+3}')
    A('s_waitcnt lgkmcnt(0)', 's_barrier')
    A('ds_write_b32 v86, v2', 'ds_write_b32 v87, v3', 's_waitcnt lgkmcnt(0)', 's_barrier')
    KA = 48
    A(*[f'ds_read_b128 {v(KA + 8*b + 4*sg, 4)}, v{88+b} offset:{16*sg}' for b in range(3) for sg in range(2)])
    A('s_waitcnt lgkmcnt(0)')
    def num(tb):
        D = 72 if tb % 2 == 0 else 8
        return [MF(v(D+4*b, 4), v(KA + 8*b + 4*sg, 4), v(PHI + 6*tb + 4*sg, 4), 0 if sg == 0 else v(D+4*b, 4)) for sg in range(2) for b in (2, 0, 1)]
    def fin(tb):
        D = 72 if tb % 2 == 0 else 8
        A(f'v_add_f32 v{D+8}, 0x358637bd, v{D+8}', f'v_rcp_f32 v{D+8}, v{D+8}')
        A(*[f'v_pk_mul_f32 {v(D+2*j, 2)}, {v(D+2*j, 2)}, {v(D+8, 2)} op_sel_hi:[1,0]' for j in range(4)])
        A(*[f'v_cvt_pk_bf16_f32 v{D+8+j}, v{D+2*j}, v{D+2*j+1}' for j in range(4)])
        A.vmem(f'buffer_store_dwordx4 {v(D+8, 4)}, v91, {s(sWS, 4)}, s74 offen sc1', 'o')
        A.vmem(f'buffer_store_dwordx2 {v(D+8, 2)}, v92, {s(sWS, 4)}, s74 offen sc1', 'o')
        A(f's_add_u32 s74, s74, {68*1024}')
    A(*num(0)); A(*num(1)); fin(0); A(*num(2)); fin(1); A(*num(3)); fin(2); fin(3)
    stamp(A, 10)
    fa = []
    for r in range(3):
        fa += [[f'v_add_u32 v2, {256*r}, v0', 'v_mul_u32_u24 v3, 6554, v2', 'v_lshrrev_b32 v3, 16, v3', 'v_mul_u32_u24 v5, 10, v3', 'v_sub_u32 v2, v2, v5'],
               [f'v_mul_u32_u24 v5, 1280, v3', f'v_lshl_add_u32 v{53+r}, v2, 4, v5', f'v_mul_u32_u24 v3, {RP}, v3', 'v_lshrrev_b32 v5, 1, v2'],
               ['v_lshl_add_u32 v3, v5, 6, v3', 'v_and_b32 v2, 1, v2', f'v_lshl_add_u32 v{50+r}, v2, 3, v3']]
    fa += [[f'v_mov_b32 v3, {BIG:#x}', 'v_cmp_gt_u32 vcc, 128, v0', f's_mul_i32 s76, s{sM2}, {64*1280}', 'v_cndmask_b32 v55, v3, v55, vcc',
            f's_mul_i32 s77, s{sNT}, 160', 's_add_u32 s76, s76, s77'], lambda A: srd(A, sX, P_X, 2048*1280), lambda A: srd(A, sT, P_OUT, 2048*1280)]
    fa += [[f'v_and_b32 v2, 15, v{vL}', f'v_mul_u32_u24 v2, {RP}, v2', f'v_and_b32 v3, 48, v{vL}', 'v_add_u32 v2, v2, v3', f's_mul_i32 s64, s{sW}, {RW}',
            'v_add_u32 v48, s64, v2']]
    xl = [VM(f'buffer_load_dwordx4 {v(56+4*r, 4)}, v{53+r}, {s(sX, 4)}, s76 offen', 'x') for r in range(3)]
    hstep(7, spread(fa, 0, 19))
    hstep(8, [])
    A.wait_vm('o'); flag_store(A, 's75')
    hstep(9, spread(xl, 0, 10))
    hstep(10, [])
    hstep(11, [(0, VM(O_TXT, 'op'))])
    A.wait_vm('op'); poll_check(A, [84], O_TXT)
    stamp(A, 11)
    for u in range(12, 17):
        for tb in range(4): aload(u, tb)(A)
    wr = lambda tb: [f'ds_write_b128 v48, {v(AC2 + 20*tb + 4*nb, 4)} offset:{tb*16*RP + 64*nb}' for nb in range(5)]
    omf = lambda u, tb, nb: MF(v(AC2 + 20*tb + 4*nb, 4), a(obreg(5*(u-12)+nb), 4), v(AB + 16*(u % 5) + 4*tb, 4), v(AC2 + 20*tb + 4*nb, 4))
    for u in (12, 13):
        A.wait_vm(f'A{u}')
        A(*[omf(u, tb, nb) for tb in range(4) for nb in range(5)])
    A.wait_vm('A16')
    for tb in range(4):
        A.weave([omf(u, tb, nb) for u in (14, 15, 16) for nb in range(5)], spread(wr(tb - 1), 4, 14) if tb else [])
    A(*wr(3))
    A('s_waitcnt lgkmcnt(0)', 's_barrier')
    stamp(A, 12)
    def rd(r): return [f'ds_read_b64 {v(96 + 32*r + 8*w + 2*q, 2)}, v{50+r} offset:{w*RW + 16*q}' for w in range(4) for q in range(4)]
    def out(r):
        S = 96 + 32*r; X = 56 + 4*r
        A(*[f'v_pk_add_f32 {v(S+2*j, 2)}, {v(S+2*j, 2)}, {v(S+16+2*j, 2)}' for j in range(8)])
        A(*[f'v_pk_add_f32 {v(S+2*j, 2)}, {v(S+2*j, 2)}, {v(S+8+2*j, 2)}' for j in range(4)])
        col = lambda c: S + 2*(c & 3) + (c >> 2)
        for j in range(4):
            A(f'v_lshlrev_b32 v2, 16, v{X+j}', f'v_and_b32 v3, 0xffff0000, v{X+j}',
              f'v_add_f32 v2, v2, v{col(2*j)}', f'v_add_f32 v3, v3, v{col(2*j+1)}', f'v_cvt_pk_bf16_f32 v{X+j}, v2, v3')
        A(f'buffer_store_dwordx4 {v(X, 4)}, v{53+r}, {s(sT, 4)}, s76 offen')
    r0, r1 = rd(0), rd(1)
    A(*r0); A('s_waitcnt lgkmcnt(4)'); A(*r1[:8]); A('s_waitcnt lgkmcnt(8)'); A(*r1[8:])
    out(0)
    A(f's_cmp_lt_u32 s{sW}, 2', 's_cbranch_scc0 Lfin2')
    A('s_waitcnt lgkmcnt(0)'); A(*rd(2)); out(1); A('s_waitcnt lgkmcnt(0)'); out(2)
    A('s_branch Lfin', 'Lfin2:', 's_waitcnt lgkmcnt(0)')
    out(1)
    A('Lfin:')
    if C.probe:
        a_, b_ = [int(x) for x in C.probe.split('-')]
        A('s_waitcnt vmcnt(0)'); stamp(A, 13)
        A(f'v_readlane_b32 s64, v{vDG}, {a_}', f'v_readlane_b32 s65, v{vDG}, {b_}', f'v_readlane_b32 s66, v{vDG}, 0', 's_nop 4',
          's_sub_u32 s65, s65, s64', 's_cmp_lt_u32 s65, 4000', 's_cselect_b32 s65, s65, 0', 's_lshl_b32 s65, s65, 2', 's_add_u32 s65, s65, 6000',
          'Lprobe:', 's_memrealtime s[68:69]', 's_waitcnt lgkmcnt(0)', 's_sub_u32 s68, s68, s66', 's_cmp_lt_u32 s68, s65', 's_cbranch_scc1 Lprobe')
    elif C.diag:
        A('s_waitcnt vmcnt(0)'); stamp(A, 13)
        A(f's_lshl_b32 s64, s2, 2', f's_add_u32 s64, s64, s{sW}', 's_lshl_b32 s64, s64, 8', f's_add_u32 s64, s64, {WS_DG}', f'v_lshlrev_b32 v2, 2, v{vL}',
          f'buffer_store_dword v{vDG}, v2, {s(sWS, 4)}, s64 offen')

def build():
    _lab[0] = 0; _n[0] = 0
    A = Asm()
    A(f'{NAME}:')
    A('s_cmp_ge_u32 s2, 256', 's_cbranch_scc1 Lend')
    A('s_load_dwordx16 s[4:19], s[0:1], 0', 's_load_dwordx4 s[20:23], s[0:1], 64', 's_load_dwordx2 s[24:25], s[0:1], 80')
    A('s_getpc_b64 s[64:65]', 'Lpc:', 's_mov_b32 s66, Lend-Lpc', 's_mov_b32 s67, 0x20000', 's_lshr_b32 s68, s2, 3', 's_lshl_b32 s68, s68, 12',
      'v_lshlrev_b32 v2, 7, v0', 'v_lshrrev_b32 v3, 5, v0', 'v_lshl_add_u32 v2, v3, 20, v2', 'buffer_load_dword v94, v2, s[64:67], s68 offen')
    A(f'v_and_b32 v{vL}, 63, v0', 'v_lshrrev_b32 v2, 6, v0', f'v_readfirstlane_b32 s{sW}, v2')
    if C.diag: A(f'v_mov_b32 v{vDG}, 0'); stamp(A, 0)
    roles(A)
    A('s_cbranch_scc1 Lq')
    qkv_role(A, False)
    qkv_role(A, True)
    roles_ffn(A)
    ffn_role(A)
    spare_role(A)
    common(A)
    A('Lend:', 's_endpgm')
    return A

HEAD = open('parallel_sum__linear_kernel_hedgehog__glu_gated_swiglu__prompt.s.ref').read().split('; Override launch')[0]
def full_text():
    A = build()
    if C.align:
        import align
        A.L, bad, n8 = align.align(A.L)
        print('misaligned 8-byte instrs:', bad, 'of', n8)
    return (HEAD + f'; @launch grid=(256,1,1) block=(256,1,1) lds={LDS}\n'
            '; Generated by gen/kernel.py: one persistent launch, phase 1 (LN-folded QKV / gate-up GEMM + epilogues),\n'
            '; flag hand-offs through d_ws, phase 2 (out = x + [h | o] @ [w2 ; wo]).\n'
            '.amdgcn_target "amdgcn-amd-amdhsa--gfx950"\n.text\n'
            f'.globl {NAME}\n.p2align 8\n.type {NAME},@function\n' + A.text() +
            '.fill 64, 4, 0xBF800000\n.section .rodata,"a"\n.p2align 6\n'
            f'.amdhsa_kernel {NAME}\n  .amdhsa_next_free_vgpr 512\n  .amdhsa_next_free_sgpr 102\n  .amdhsa_accum_offset 256\n'
            '  .amdhsa_group_segment_fixed_size 0\n  .amdhsa_kernarg_size 88\n  .amdhsa_user_sgpr_count 2\n'
            '  .amdhsa_user_sgpr_kernarg_segment_ptr 1\n  .amdhsa_system_sgpr_workgroup_id_x 1\n.end_amdhsa_kernel\n'), A

if __name__ == '__main__':
    for kv in sys.argv[2:]:
        k, x = kv.split('=')
        setattr(C, k, type(getattr(C, k))(eval(x)) if not isinstance(getattr(C, k), str) else x)
    t, A = full_text()
    open(sys.argv[1], 'w').write(t)
    print('pads', A.pads, 'lines', len(A.L))
```

```python
import re
def v(i, n=1): return f'v{i}' if n == 1 else f'v[{i}:{i+n-1}]'
def a(i, n=1): return f'a{i}' if n == 1 else f'a[{i}:{i+n-1}]'
def s(i, n=1): return f's{i}' if n == 1 else f's[{i}:{i+n-1}]'

_R = re.compile(r'^-?\|?(?:abs\()?([vas])(?:(\d+)|\[(\d+):(\d+)\])\)?\|?$')
def regs(op):
    op = op.strip()
    if op in ('vcc', 'vcc_lo', 'vcc_hi'): return {('s', 'vcc')}
    if op in ('exec', 'exec_lo', 'exec_hi'): return {('s', 'exec')}
    if op == 'm0': return {('s', 'm0')}
    m = _R.match(op)
    if not m: return set()
    if m.group(2) is not None: return {(m.group(1), int(m.group(2)))}
    return {(m.group(1), i) for i in range(int(m.group(3)), int(m.group(4)) + 1)}

TRANS = ('v_exp_f32', 'v_log_f32', 'v_rcp_f32', 'v_rsq_f32', 'v_sqrt_f32')
class I:
    def __init__(self, txt):
        self.txt = txt
        t = txt.split(';')[0].strip()
        self.op = t.split()[0] if t else ''
        rest = t[len(self.op):].strip()
        ops = [x.strip() for x in re.split(r',(?![^\[]*\])', rest)] if rest else []
        self.mods = []
        for i, x in enumerate(ops):
            parts = x.split()
            ops[i] = parts[0]; self.mods += parts[1:]
        op = self.op
        self.kind = 'other'; self.w = set(); self.r = set(); self.states = 1
        rs = [regs(x) for x in ops]
        U = lambda l: set().union(*l) if l else set()
        if op == 's_nop': self.states = int(ops[0]) + 1
        elif op.startswith('v_mfma'):
            self.kind = 'mfma'; self.w = rs[0]; self.ab = rs[1] | rs[2]; self.c = rs[3]; self.r = self.ab | self.c
        elif op.startswith('v_'):
            self.kind = 'valu'; self.w = set(rs[0]); self.r = U(rs[1:])
            if 'permlane' in op: self.w |= rs[1]; self.r |= rs[0]
            if op.startswith(('v_fmac', 'v_writelane', 'v_dot2c')) or '_dpp' in op: self.r |= rs[0]
            if op.startswith('v_cndmask') and len(ops) == 3: self.r |= {('s', 'vcc')}
            self.trans = op.startswith(TRANS)
            self.dpp = '_dpp' in op
        elif op.startswith('ds_read'):
            self.kind = 'ds'; self.w = rs[0]; self.r = U(rs[1:])
        elif op.startswith('ds_write'):
            self.kind = 'ds'; self.r = U(rs)
        elif op.startswith(('buffer_load', 'global_load')):
            self.kind = 'vmem'
            if 'lds' in self.mods: self.r = U(rs) | {('s', 'm0')}; self.dma = True
            else: self.w = rs[0]; self.r = U(rs[1:])
        elif op.startswith(('buffer_store', 'global_store', 'buffer_atomic')):
            self.kind = 'vmem'; self.r = U(rs)
            self.wide = rs[0] if op.endswith(('x3', 'x4')) else set()
        elif op.startswith('s_'):
            self.kind = 'salu'
            if op.startswith(('s_cmp', 's_cbranch', 's_branch', 's_waitcnt', 's_barrier', 's_endpgm', 's_sleep', 's_setprio')): self.r = U(rs)
            else: self.w = rs[0] if rs else set(); self.r = U(rs[1:])

def need(p, c):
    n = 0
    vw = {x for x in p.w if x[0] in 'va'}; sw = {x for x in p.w if x[0] == 's'}
    if p.kind == 'valu':
        if c.kind == 'mfma' and vw & c.r: n = max(n, 2)
        if c.kind == 'valu':
            if p.trans and not c.trans and vw & c.r: n = max(n, 1)
            if p.trans and c.trans and vw & c.r: n = max(n, 1)
            if ('permlane' in c.op or c.dpp) and vw & c.r: n = max(n, 2)
            if c.op.startswith(('v_readfirstlane', 'v_readlane')) and vw & c.r: n = max(n, 1)
            if sw & c.r: n = max(n, 4 if c.op.startswith(('v_readlane', 'v_writelane')) else 2)
        if c.kind == 'vmem' and sw & c.r: n = max(n, 5)
        if c.kind == 'salu' and sw & c.r and not c.op.startswith('s_cbranch'): n = max(n, 1)
    if p.kind == 'mfma':
        if c.kind == 'mfma':
            if p.w & c.ab: n = max(n, 8)
            if p.w & c.c and p.w != c.c: n = max(n, 6)
            if p.w & c.w and not (p.w & c.c): n = max(n, 6)
        elif c.kind in ('valu', 'ds', 'vmem'):
            if p.w & (c.r | c.w): n = max(n, 8)
            if c.kind == 'valu' and p.c & c.w: n = max(n, 3)
    if p.kind == 'vmem' and getattr(p, 'wide', None) and c.kind in ('valu', 'ds', 'vmem', 'mfma') and p.wide & c.w: n = max(n, 2)
    if p.kind == 'salu' and ('s', 'm0') in p.w and getattr(c, 'dma', False): n = max(n, 1)
    return n

class VMop:
    def __init__(self, txt, tag): self.txt = txt; self.tag = tag
    def __call__(self, A): A.vmem(self.txt, self.tag)
class Atomic:
    def __init__(self, f, n): self.f = f; self.n = n
    def __call__(self, A): A.run(self.f)
def flat(f):
    if isinstance(f, (list, tuple)): return [y for x in f for y in flat(x)]
    return [f]
def units(x):
    if isinstance(x, str): return 2 if x.startswith(TRANS) or 'permlane' in x or x.startswith('v_mfma') else 1
    if isinstance(x, Atomic): return x.n
    return 1

class Asm:
    def __init__(self):
        self.L = []; self.vm = []; self.h = []; self.pads = 0
    def __call__(self, *ss):
        for x in ss:
            if x.endswith(':') or x.startswith('.') or x.startswith(';'):
                self.L.append(x); continue
            c = I(x)
            d = 0; pad = 0
            for p in reversed(self.h):
                pad = max(pad, need(p, c) - d)
                d += p.states
                if d >= 8: break
            if pad > 0:
                self.pads += pad
                self.L.append(f's_nop {pad-1}'); self.h.append(I(f's_nop {pad-1}'))
            self.L.append(x); self.h.append(c)
            if len(self.h) > 32: self.h = self.h[-16:]
    def vmem(self, txt, tag):
        self(txt); self.vm.append(tag)
    def vm_after(self, tags):
        if isinstance(tags, str): tags = (tags,)
        n = 0
        for t in reversed(self.vm):
            if t in tags: return n
            n += 1
        return None
    def wait_vm(self, tags):
        n = self.vm_after(tags)
        assert n is not None, tags
        self(f's_waitcnt vmcnt({min(n, 63)})')
    def run(self, f):
        if callable(f): f(self)
        elif isinstance(f, str): self(f)
        else:
            for x in f: self.run(x)
    def weave(self, mf, ev, cap=None):
        q = []
        for _, (pos, f) in sorted(enumerate(ev), key=lambda e: (e[1][0], e[0])):
            for x in flat(f): q.append((pos, x))
        def place(cap):
            k = 0; out = []
            pre = []
            while k < len(q) and q[k][0] <= 0: pre.append(q[k][1]); k += 1
            out.append(pre); debt = 0
            for i in range(len(mf)):
                g = []; room = cap - debt
                while k < len(q) and q[k][0] <= i + 1 and (room >= units(q[k][1]) or (room > 0 and room == cap - debt and not g)):
                    room -= units(q[k][1]); g.append(q[k][1]); k += 1
                    if isinstance(g[-1], str) and ' m0,' in g[-1]: break
                debt = 0
                out.append(g)
            return out, q[k:]
        c = cap or 2
        while True:
            out, rest = place(c)
            if cap or not rest or c >= 12: break
            c += 1
        self.run(out[0])
        for m, g in zip(mf, out[1:]):
            self(m); self.run(g)
        self.run([x for _, x in rest])
    def text(self): return '\n'.join(self.L) + '\n'

def spread(fill, lo, hi):
    n = len(fill)
    return [(lo + (i + 0.5)/n*(hi - lo), f) for i, f in enumerate(fill)]

def srdl(r, base, nbytes):
    return [f's_mov_b32 s{r}, s{base}', f's_mov_b32 s{r+1}, s{base+1}', f's_mov_b32 s{r+2}, {nbytes}', f's_mov_b32 s{r+3}, 0x20000']
def srd(A, r, base, nbytes):
    A(f's_mov_b32 s{r}, s{base}', f's_mov_b32 s{r+1}, s{base+1}', f's_mov_b32 s{r+2}, {nbytes}', f's_mov_b32 s{r+3}, 0x20000')
```

```python
import sys
from asmlib import *

NAME = 'parallel_sum__linear_kernel_hedgehog__glu_gated_swiglu__prompt_kernel'
WS_A, WS_BT, WS_Q, WS_KV, WS_ST, WS_CS, WS_FL, WS_DG, WS_END = 0, 0x900000, 0xC00000, 0xF00000, 0x1000000, 0x1010000, 0x1048000, 0x10C0000, 0x1100000
F_E, F_H, F_Q, F_KV, F_O, F_B = [WS_FL + 128*n for n in (0, 256, 880, 1008, 1264, 2288)]
KVP = 3456
BIG = 0x7F000000
SLOT = 53248; SP = 3*SLOT; CSS = SP + 1024; BO = 67584; KVB = 153600; KVBP = 144; IMG = 528; RP = 336; RW = 64*RP
QP = 10240
LDS = 163840
P_X, P_WQKV, P_WPHI, P_WO, P_W1, P_W3, P_W2, P_OUT, P_DBG, P_WS = 4, 6, 8, 10, 14, 16, 18, 20, 22, 24
sX, sWA, sWB, sWS, sT, sD, sT2 = 28, 32, 36, 40, 44, 48, 52
sW, sROLE, sMT, sCT, sOX, sOW, sMX, sMW = 56, 57, 58, 59, 60, 61, 62, 63
sL, sP0, sP1, sY, sCNT = 80, 82, 83, 84, 85
sB, sA = 86, 91
sM2, sNT, sJ0, sJ1, sJ2 = 95, 96, 97, 98, 99
sMO, sETA, sBO = 26, 27, 3
sCSM, sCSO, sK0, sK, sDIR = 72, 73, 74, 75, 13
vL, vL16, vZ, vDX, vDW, vONE, vRX, vRW = 1, 6, 7, 8, 16, 21, 22, 28
vWQ = 8; vDG = 95
ACC = 96
LOG2E = '0x3fb8aa3b'

class Cfg:
    diag = False; cap = 40000; pre = 2; aux = ''; rd_end = 30; split = 7; p2 = '4x8'; steps = False; eF = 11; eP = 14; eC = 15; rev = True; nb = 7; ne = 18; nk = 50; nw = 8; jw = (5, 6, 7, 8); align = True; nob = False; cyc = False; probe = ''; nojobs = False; notail = False
C = Cfg()

def stamp(A, k):
    if C.diag:
        A('s_memrealtime s[100:101]', 's_waitcnt lgkmcnt(0)', f'v_writelane_b32 v{vDG}, s100, {k}')
        if C.cyc: A('s_memtime s[100:101]', 's_waitcnt lgkmcnt(0)', f'v_writelane_b32 v{vDG}, s100, {k+32}')

_lab = [0]
def poll_check(A, rg, reissue):
    _lab[0] += 1; n = _lab[0]
    def chk():
        r = rg[0]
        if len(rg) == 4:
            A(f'v_min_u32 v{rg[0]}, v{rg[0]}, v{rg[1]}', f'v_min3_u32 v{rg[0]}, v{rg[0]}, v{rg[2]}, v{rg[3]}')
        A(f'v_cmp_eq_u32 vcc, 0, v{r}', f's_cbranch_vccz Lok{n}')
    chk()
    A(f's_mov_b32 s{sCNT}, {C.cap}', f'Lsp{n}:'); A.run(reissue); A('s_waitcnt vmcnt(0)')
    chk()
    A(f's_sub_u32 s{sCNT}, s{sCNT}, 1', f's_cmp_lg_u32 s{sCNT}, 0', f's_cbranch_scc1 Lsp{n}', f'Lok{n}:')

def poll_block(A, rg, txt):
    A.vmem(txt, 'poll'); A('s_waitcnt vmcnt(0)'); poll_check(A, rg, txt)

def flag_store(A, soff, srd_=sWS):
    A(f'buffer_store_dword v{vONE}, v{vZ}, {s(srd_, 4)}, {soff} offen sc1')

def roles(A):
    A('s_and_b32 s64, s2, 7', 's_lshr_b32 s65, s2, 3', 's_lshr_b32 s66, s64, 2', 's_and_b32 s67, s64, 3')
    A('s_cmp_lt_u32 s65, 12', 's_cbranch_scc0 Lrole_ffn')
    A('s_and_b32 s68, s65, 3', f's_lshl_b32 s{sMT}, s66, 2', f's_add_u32 s{sMT}, s{sMT}, s68',
      's_lshr_b32 s68, s65, 2', f's_lshr_b32 s{sROLE}, s68, 1',
      's_lshl_b32 s69, s67, 1', 's_add_u32 s69, s69, s68',
      's_cmp_eq_u32 s68, 2', f's_cselect_b32 s{sCT}, s67, s69')

def roles_ffn(A):
    A('Lrole_ffn:')
    A('s_sub_u32 s68, s65, 12', 's_mul_i32 s69, s68, 43', 's_lshr_b32 s69, s69, 7',
      's_mul_i32 s70, s69, 3', 's_sub_u32 s70, s68, s70',
      's_mul_i32 s71, s66, 7', f's_add_u32 s{sMT}, s69, s71',
      's_mul_i32 s71, s67, 3', f's_add_u32 s{sCT}, s71, s70',
      f's_cmp_lt_u32 s{sMT}, 13', 's_cbranch_scc1 Lffn',
      f's_mov_b32 s{sMT}, 6', f's_add_u32 s{sCT}, s71, 2',
      's_cmp_eq_u32 s68, 19', 's_cbranch_scc1 Lspare')

def role_of(wg):
    xcd = wg & 7; loc = wg >> 3; a_ = xcd >> 2; b = xcd & 3
    if loc < 12:
        m = 4*a_ + (loc & 3); r = loc >> 2
        return (1, m, b) if r == 2 else (0, m, 2*b + r)
    e = loc - 12
    mt = e // 3 + 7*a_; ft = 3*b + e % 3
    if mt < 13: return (2, mt, ft)
    return (3 if e == 19 else 2, 6, 3*b + 2)

def common_consts(A):
    srd(A, sWS, P_WS, WS_END); srd(A, sD, P_DBG, 256)
    A(f'v_lshlrev_b32 v{vL16}, 4, v{vL}', f'v_mov_b32 v{vONE}, 1', f'v_mov_b32 v{vZ}, {BIG:#x}',
      f'v_cmp_eq_u32 vcc, 0, v{vL}', f'v_cndmask_b32 v{vZ}, v{vZ}, 0, vcc')
    A(f's_mov_b32 s{sL}, {LOG2E}', f's_mov_b32 s{sL+1}, {LOG2E}', f's_mov_b32 s{sP0}, 0x05040100', f's_mov_b32 s{sP1}, 0x07060302')
    A(f's_lshl_b32 s12, s{sW}, 10', 's_mov_b32 s78, 0xffff0000')
    A('s_and_b32 s64, s2, 7', 's_lshr_b32 s65, s2, 3', 's_and_b32 s66, s65, 3', f's_lshl_b32 s{sETA}, s64, 2',
      f's_add_u32 s{sETA}, s{sETA}, s66', f's_lshr_b32 s{sMO}, s65, 2')
    if C.p2 == '4x8': A(f's_mov_b32 s{sM2}, s{sETA}', f's_mov_b32 s{sNT}, s{sMO}')
    else: A('s_lshr_b32 s66, s64, 1', 's_lshl_b32 s66, s66, 3', 's_and_b32 s67, s65, 7', f's_add_u32 s{sM2}, s66, s67',
            's_and_b32 s66, s64, 1', 's_lshl_b32 s66, s66, 2', 's_lshr_b32 s67, s65, 3', f's_add_u32 s{sNT}, s66, s67')
    A(f's_mul_i32 s{sBO}, s{sW}, {-7*1024}', f's_add_u32 s{sBO}, s{sBO}, {48*1024}')
    A(f's_mul_i32 s64, s{sNT}, {5*68*1024}', f's_mul_i32 s65, s{sW}, {12*1024}', 's_add_u32 s64, s64, s65',
      f's_add_u32 s{sB}, s64, {WS_BT}')
    for nb in range(1, 5): A(f's_add_u32 s{sB+nb}, s{sB+nb-1}, {68*1024}')
    A(f's_mul_i32 s64, s{sM2}, {4*68*1024}', f's_add_u32 s{sA}, s64, s65')
    for tb in range(1, 4): A(f's_add_u32 s{sA+tb}, s{sA+tb-1}, {68*1024}')

def setup_x(A, ffn):
    t0, t1, t2, t3 = 2, 3, 4, 5
    nx = 5 if ffn else 8
    A(f's_mul_i32 s64, s{sMT}, {160 if ffn else 256}', f's_mul_i32 s65, s{sW}, {8*nx}', 's_add_u32 s64, s64, s65',
      's_mul_i32 s64, s64, 1280')
    A(f'v_lshrrev_b32 v{t0}, 3, v{vL}', f'v_mul_u32_u24 v{t0}, 1280, v{t0}', f'v_add_u32 v{t0}, s64, v{t0}')
    A(f'v_lshrrev_b32 v{t1}, 4, v{vL}', f'v_and_b32 v{t2}, 7, v{vL}', f'v_xor_b32 v{t1}, v{t1}, v{t2}')
    if ffn:
        A(f's_and_b32 s65, s{sW}, 1', 's_lshl_b32 s65, s65, 2', f'v_xor_b32 v{t1}, s65, v{t1}')
    A(f'v_lshl_add_u32 v{t2}, v{t1}, 4, v{t0}', f'v_xor_b32 v{t1}, 4, v{t1}', f'v_lshl_add_u32 v{t3}, v{t1}, 4, v{t0}')
    for i in range(nx):
        A(f'v_add_u32 v{vDX+i}, {i*10240 - (i % 4)*1024}, v{t2 if i % 2 == 0 else t3}')
    A(f's_mul_i32 s{sMX}, s{sW}, {nx*1024}')
    A(f's_mul_i32 s66, s{sMT}, 43', 's_lshr_b32 s66, s66, 7', 's_mul_i32 s67, s66, 3', f's_sub_u32 s67, s{sMT}, s67',
      's_lshl_b32 s68, s67, 2', 's_lshr_b32 s68, 0x490, s68', f's_and_b32 s{sK0}, s68, 15', f's_mov_b32 s{sK}, s{sK0}', f's_lshl_b32 s{sOX}, s{sK}, 7')

def setup_w(A, ffn):
    t0, t1, t2, t3 = 2, 3, 4, 5
    pitch = 64*(3072 if ffn else 3840)
    A(f's_mul_i32 s{sOW}, s{sK}, {pitch}', 's_cmp_eq_u32 s67, 1', f's_cselect_b32 s{sDIR}, -1, 1',
      f's_lshl_b32 s{sCSM}, 1, s66', 's_cmp_eq_u32 s67, 2', 's_cselect_b32 s68, 3, 15', f's_and_b32 s{sCSM}, s{sCSM}, s68')
    if not ffn: A(f's_cmp_lt_u32 s{sMT}, 2', 's_cselect_b32 s68, 8, 0', f's_or_b32 s{sCSM}, s{sCSM}, s68')
    if ffn:
        A(f's_mul_i32 s64, s{sW}, {16*3072}', f's_lshl_b32 s65, s{sCT}, 8', 's_add_u32 s64, s64, s65')
        A(f'v_lshrrev_b32 v{t0}, 4, v{vL}', f'v_mul_u32_u24 v{t1}, 3072, v{t0}', f'v_add_u32 v{t1}, s64, v{t1}',
          f'v_lshlrev_b32 v{t0}, 1, v{t0}', f'v_and_b32 v{t2}, 15, v{vL}', f'v_xor_b32 v{t0}, v{t0}, v{t2}',
          f'v_lshl_add_u32 v{t2}, v{t0}, 4, v{t1}', f'v_xor_b32 v{t0}, 8, v{t0}', f'v_lshl_add_u32 v{t3}, v{t0}, 4, v{t1}')
        for j in range(4):
            A(f'v_add_u32 v{vDW+j}, {j*4*3072 - j*1024}, v{t2 if j < 2 else t3}')
        A(f's_lshl_b32 s{sMW}, s{sW}, 12', f's_add_u32 s{sMW}, s{sMW}, 20480')
    else:
        A(f's_lshr_b32 s64, s{sW}, 1',
          f's_mul_i32 s65, s{sCT}, 320', 's_mul_i32 s66, s64, 160', 's_add_u32 s65, s65, s66',
          f's_mul_i32 s66, s{sCT}, 160', 's_mul_i32 s67, s64, 1280', 's_add_u32 s66, s66, s67', 's_add_u32 s66, s66, 1280',
          f's_cmp_eq_u32 s{sROLE}, 1', 's_cselect_b32 s65, s65, s66',
          f's_and_b32 s64, s{sW}, 1', 's_mul_i32 s64, s64, 320')
        for j in range(5):
            A(f'v_add_u32 v{t0}, s64, v{vL}', f'v_add_u32 v{t0}, {64*j}, v{t0}',
              f'v_mul_u32_u24 v{t1}, 6554, v{t0}', f'v_lshrrev_b32 v{t1}, 16, v{t1}',
              f'v_mul_u32_u24 v{t2}, 10, v{t1}', f'v_sub_u32 v{t0}, v{t0}, v{t2}',
              f'v_lshrrev_b32 v{t2}, 1, v{t1}', f'v_xor_b32 v{t2}, v{t2}, v{t1}', f'v_and_b32 v{t2}, 4, v{t2}',
              f'v_mul_u32_u24 v{t2}, 3, v{t2}', f'v_xor_b32 v{t1}, v{t1}, v{t2}',
              f'v_mul_u32_u24 v{t1}, 3840, v{t1}', f'v_lshl_add_u32 v{t1}, v{t0}, 4, v{t1}',
              f'v_add_u32 v{t1}, s65, v{t1}', f'v_subrev_u32 v{vDW+j}, {(j % 4)*1024}, v{t1}')
        A(f's_mul_i32 s{sMW}, s{sW}, 5120', f's_add_u32 s{sMW}, s{sMW}, 32768')

def setup_reads(A, ffn):
    t0, t1, t2, t3 = 2, 3, 4, 5
    WOFF = 20480 if ffn else 32768
    A(f'v_and_b32 v{t0}, 15, v{vL}', f'v_lshrrev_b32 v{t1}, 4, v{vL}',
      f'v_lshrrev_b32 v{t2}, 1, v{t0}', f'v_xor_b32 v{t2}, v{t2}, v{t1}',
      f'v_lshlrev_b32 v{t2}, 4, v{t2}', f'v_lshl_add_u32 v{t2}, v{t0}, 7, v{t2}')
    if not ffn: A(f'v_add_u32 v{t2}, s{sMX}, v{t2}')
    A(f'v_xor_b32 v{t3}, 64, v{t2}')
    for sl in range(3):
        A(f'v_add_u32 v{vRX+2*sl}, {sl*SLOT}, v{t2}', f'v_add_u32 v{vRX+2*sl+1}, {sl*SLOT}, v{t3}')
    A(f'v_bfe_u32 v{t0}, v{vL}, 2, 2', f'v_and_b32 v{t3}, 3, v{vL}')
    if ffn:
        A(f'v_and_b32 v{t2}, 1, v{t1}', f'v_lshl_add_u32 v{t2}, v{t2}, 2, v{t0}',
          f's_lshl_b32 s64, s{sW}, 1', f'v_xor_b32 v{t2}, s64, v{t2}',
          f'v_lshlrev_b32 v{t2}, 5, v{t2}', f'v_lshl_add_u32 v{t2}, v{t3}, 3, v{t2}',
          f'v_lshl_add_u32 v{t0}, v{t1}, 3, v{t0}', f'v_lshl_add_u32 v{t2}, v{t0}, 8, v{t2}',
          f'v_xor_b32 v{t3}, 32, v{t2}')
        for sl in range(3):
            A(f'v_add_u32 v{vRW+2*sl}, {sl*SLOT+WOFF}, v{t2}', f'v_add_u32 v{vRW+2*sl+1}, {sl*SLOT+WOFF}, v{t3}')
    else:
        A(f'v_and_b32 v{t2}, 1, v{t1}', f'v_lshl_add_u32 v{t0}, v{t2}, 2, v{t0}',
          f'v_lshrrev_b32 v{t2}, 1, v{t1}', f'v_lshl_add_u32 v{t0}, v{t2}, 4, v{t0}',
          f'v_mul_u32_u24 v{t0}, 160, v{t0}', f'v_mul_u32_u24 v{t3}, 40, v{t3}', f'v_add_u32 v{t2}, v{t0}, v{t3}')
        for sl in range(3):
            A(f'v_add_u32 v{vRW+2*sl}, {sl*SLOT+WOFF}, v{t2}')

def VM(txt, tag, pre=()):
    return list(pre) + [VMop(txt, tag)]

def knext(ffn):
    return [f's_add_u32 s{sK}, s{sK}, s{sDIR}', f's_cmp_eq_u32 s{sK}, 10', f's_cselect_b32 s{sK}, 0, s{sK}', f's_lshl_b32 s{sOX}, s{sK}, 7',
            f's_mul_i32 s{sOW}, s{sK}, {64*(3072 if ffn else 3840)}']

def dma_list(ffn, slab):
    sl = slab % 3
    out = []
    def grp(mbase, moff, vreg, srd_, so, n, first=()):
        for i in range(n):
            pre = list(first) if i == 0 else []
            if i % 4 == 0: pre += [f's_add_u32 m0, s{mbase}, {moff + i*1024}']
            out.append(VM(f'buffer_load_dwordx4 v{vreg+i}, {s(srd_, 4)}, s{so} offen offset:{(i % 4)*1024} {C.aux} lds', f'slab{slab}', pre))
    if ffn:
        grp(sMX, sl*SLOT, vDX, sX, sOX, 5, knext(ffn) if slab else [])
        grp(sMW, sl*SLOT, vDW, sWA, sOW, 4)
        grp(sMW, sl*SLOT + 16384, vDW, sWB, sOW, 4)
    else:
        grp(sMX, sl*SLOT, vDX, sX, sOX, 8, knext(ffn) if slab else [])
        grp(sMW, sl*SLOT, vDW, sWA, sOW, 5)
    return out

def frag_regs(ffn, st):
    base = 56*st
    if ffn: return [base + 4*i for i in range(10)], [base + 40 + 4*i for i in range(4)]
    return [base + 4*i for i in range(4)], [base + 16 + 4*i for i in range(10)]

def read_list(ffn, step):
    slab, s_ = step // 2, step % 2
    sl = slab % 3
    xr, wr = frag_regs(ffn, step % 2)
    X = [f'ds_read_b128 {a(r, 4)}, v{vRX+2*sl+s_} offset:{tb*2048}' for tb, r in enumerate(xr)]
    W = []
    for b, r in enumerate(wr):
        for j in range(2):
            if ffn: W.append(f'ds_read_b64_tr_b16 {a(r+2*j, 2)}, v{vRW+2*sl+(b & 1)} offset:{(b >> 1)*16384 + (32*s_+4*j)*256}')
            else: W.append(f'ds_read_b64_tr_b16 {a(r+2*j, 2)}, v{vRW+2*sl} offset:{(b // 5)*10240 + (32*s_+8*j)*160 + 8*(b % 5)}')
    return (W + X) if ffn else (X + W)

def acc(ffn, tb, cb): return ACC + 4*(tb*4 + cb) if ffn else ACC + 4*(tb*10 + cb)
def MF(d, A_, B_, c): return f'v_mfma_f32_16x16x32_bf16 {d}, {A_}, {B_}, {c}'

def mfma_list(ffn, step):
    xr, wr = frag_regs(ffn, step % 2)
    if ffn: order = [(tb, cb) for tb in range(10) for cb in (range(4) if tb % 2 == 0 else range(3, -1, -1))]
    else: order = [(tb, cb) for cb in range(10) for tb in (range(4) if cb % 2 == 0 else range(3, -1, -1))]
    return [MF(v(acc(ffn, tb, cb), 4), a(wr[cb], 4), a(xr[tb], 4), 0 if step == 0 else v(acc(ffn, tb, cb), 4)) for tb, cb in order]

def mainloop(A, ffn, head, extra, preb, tag):
    nx = 5 if ffn else 8
    d0 = dma_list(ffn, 0)
    setup_x(A, ffn)
    A('s_waitcnt lgkmcnt(0)')
    srd(A, sX, P_X, 2048*1280)
    A.run(d0[:nx])
    setup_w(A, ffn)
    if ffn: srd(A, sWA, P_W1, 640*3072); srd(A, sWB, P_W3, 640*3072)
    else: srd(A, sWA, P_WQKV, 640*3840)
    A.run(d0[nx:])
    setup_reads(A, ffn)
    for slab in range(1, C.pre):
        A.run(dma_list(ffn, slab))
    common_consts(A)
    stamp(A, 1)
    A.wait_vm('slab0'); A('s_barrier')
    stamp(A, 2)
    A(*read_list(ffn, 0)); A('s_waitcnt lgkmcnt(0)')
    pend = [f for slab in range(C.pre, 3) for f in dma_list(ffn, slab)]
    for step in range(20):
        slab = step // 2
        if step % 2 == 1:
            if step < 19: A.wait_vm(f'slab{slab+1}')
            if step in preb: preb[step](A)
            A('s_barrier')
            if slab + 3 < 10: pend = dma_list(ffn, slab + 3)
        if step in head: head[step](A)
        if step % 2 == 1 and C.steps: stamp(A, 16 + step // 2)
        rd = read_list(ffn, step + 1) if step < 19 else []
        if step % 2 == 1: dm, pend = pend[:C.split], pend[C.split:]
        else: dm, pend = pend, []
        ev = spread(rd, 0, C.rd_end) + spread(extra.get(step, []), 0.2, 37) + spread(dm, 2, 39.9)
        A.weave(mfma_list(ffn, step), ev)
        if step < 8: A(f's_bitcmp1_b32 s{sCSM}, {step // 2}', f's_cbranch_scc1 Lcs{tag}{step}', f'Lcr{tag}{step}:')
        if step < 19: A('s_waitcnt lgkmcnt(0)')
    stamp(A, 3)

sW10 = 12
def breg(i): return 112 + 4*i if i < 21 else (4*(i - 21) if i < 49 else 196 + 4*(i - 49))
def obreg(j): return 240 + 4*j if j < 4 else breg(j - 4)
def bload(i):
    u, nb = divmod(i, 5)
    return VM(f'buffer_load_dwordx4 {a(breg(i), 4)}, v{vL16}, {s(sWS, 4)}, s64 offen offset:{(u % 4)*1024} sc1', 'B',
              [f's_add_u32 s64, s{sB+nb}, {(u // 4)*4096}'])
def oload(j):
    u, nb = divmod(j, 5)
    pre = [f's_add_u32 s64, s{sB+nb}, s{sBO}']
    if j < 4: return VM(f'buffer_load_dwordx4 {a(obreg(j), 4)}, v{vL16}, {s(sWS, 4)}, s64 offen sc1', 'B', pre)
    return VM(f'buffer_load_dwordx4 v{vL16}, {s(sWS, 4)}, s64 offen sc1 lds', 'B',
              pre + [f's_add_u32 m0, s{sW10}, {BO + (j - 4)*4096}', f's_add_u32 s64, s64, {u*1024}'])

Z_TXT = lambda r: f'buffer_load_dword v{r+1}, v{r}, {s(sD, 4)}, 0 offen sc1'
def z_issue(r): return [[f'v_and_b32 v{r}, 3, v{vL}', f'v_lshlrev_b32 v{r}, 2, v{r}'], VM(Z_TXT(r), 'z')]
def z_check(r): return lambda A: poll_check(A, [r+1], Z_TXT(r))
_n = [0]
def wave0(body):
    def f(A):
        _n[0] += 1; n = _n[0]
        A(f's_cmp_eq_u32 s{sW}, 0', f's_cbranch_scc0 Lw0_{n}'); body(A); A(f'Lw0_{n}:')
    return f
E_TXT = [f'buffer_load_dword v{86+k}, v90, {s(sWS, 4)}, s{68+k} offen sc1' for k in range(4)]
def e_flag_(A): A('s_lshl_b32 s64, s2, 7', f's_add_u32 s64, s64, {F_E}'); flag_store(A, 's64')
def b_flag_(A): A(f's_lshr_b32 s64, s{sY}, 2', 's_lshl_b32 s64, s64, 7', f's_add_u32 s64, s64, {F_B}'); flag_store(A, 's64')
def e_issue(A, base=F_E, offs=(0, 64, 128, 192)):
    A(f'v_lshlrev_b32 v90, 7, v{vL}', *[f's_mov_b32 s{68+k}, {base + 128*o}' for k, o in enumerate(offs)])
    wave0(lambda A: A(*E_TXT))(A)
def b_issue(A): e_issue(A, F_B, (0, 64, 96, 96))
def e_check_(A): poll_check(A, [86, 87, 88, 89], E_TXT)
def covered(tags, by):
    def f(A):
        for t in tags: assert A.vm_after(t) > A.vm_after(by), (t, by)
    return f
def L(*x): return list(x)
def seq(*fs): return lambda A: [f(A) for f in fs]
def add_e(head, preb, ffn):
    def hook(d, st, f): d[st] = seq(d[st], f) if st in d else f
    mark = {}
    hook(head, C.eP, lambda A: (e_issue(A), mark.__setitem__('n', len(A.vm))))
    hook(preb, C.eC, wave0(seq(lambda A: A(f's_waitcnt vmcnt({len(A.vm) - mark["n"]})'), e_check_)))
    assert C.eF >= 11
    if ffn: hook(head, C.eF, covered(['st'], f'slab{(C.eF+1)//2}'))
    hook(head, C.eF, wave0(e_flag_))

def wq_dma():
    def f(A):
        A(f's_mul_i32 s64, s{sETA}, 800', 's_mov_b32 s66, m0', f's_mov_b32 m0, {SP}', 's_mov_b32 exec_hi, 0x3ffff')
        A.vmem(f'buffer_load_dwordx4 v{vL16}, {s(sT, 4)}, s64 offen lds', 'wq')
        A('s_mov_b32 exec_hi, -1', 's_mov_b32 m0, s66')
    return [srdl(sT, P_WPHI, 32*800), Atomic(f, 7)]
def wq_build(t):
    ad = t + 8; mk = t + 9
    pre = [f's_mov_b32 s64, {SP}', f'v_bfe_u32 v2, v{vL}, 2, 2', f'v_mul_u32_u24 v2, 10, v2', f'v_lshrrev_b32 v3, 4, v{vL}', f'v_mul_u32_u24 v4, 320, v3',
           f'v_add3_u32 v2, v2, v4, s64', f'v_and_b32 v4, 3, v{vL}', f'v_lshl_add_u32 v{ad}, v4, 1, v2', f'v_add_u32 v{mk}, 8, v2']
    r0 = [f'ds_read_u16 v{t+e}, v{ad} offset:{40*e}' for e in range(8)]
    p0 = [f'v_lshl_or_b32 v{vWQ+j}, v{t+2*j+1}, 16, v{t+2*j}' for j in range(4)]
    r1 = [f'ds_read_u16 v{t+e}, v{mk} offset:{40*e}' for e in range(8)]
    p1 = [f'v_lshl_or_b32 v{vWQ+4+j}, v{t+2*j+1}, 16, v{t+2*j}' for j in range(4)]
    msk = [f'v_cmp_gt_u32 vcc, 48, v{vL}'] + [f'v_cndmask_b32 v{vWQ+j}, 0, v{vWQ+j}, vcc' for j in (0, 1, 4, 5)] + \
          [f'v_cmp_gt_u32 vcc, 32, v{vL}'] + [f'v_cndmask_b32 v{vWQ+j}, 0, v{vWQ+j}, vcc' for j in (2, 3, 6, 7)]
    return [pre] + r0, p0 + r1, p1 + [msk]

def chop(lst, steps, extra):
    n = len(steps); m = -(-len(lst) // n)
    for k, st in enumerate(steps): extra[st] = extra.get(st, []) + lst[k*m:(k+1)*m]

RTI, RTO = 64, (34, 38, 84, 2)
def retile_scalar():
    return L(f's_mul_i32 s64, s{sY}, 6554', 's_lshr_b32 s64, s64, 16', 's_mul_i32 s65, s64, 10', f's_sub_u32 s65, s{sY}, s65',
      f's_mul_i32 s{sJ1}, s65, {4*68}', f's_add_u32 s{sJ1}, s{sJ1}, s64', f's_lshl_b32 s{sJ1}, s{sJ1}, 10', f's_add_u32 s{sJ1}, s{sJ1}, {WS_BT}',
      f's_mov_b32 s{sT+2}, {640*1280}', 's_mov_b32 s76, 10240', 's_mov_b32 s77, 5120',
      's_cmp_lt_u32 s64, 48', f's_cselect_b32 s{sT}, s{P_W2}, s{P_WO}', f's_cselect_b32 s{sT+1}, s{P_W2+1}, s{P_WO+1}',
      f's_cselect_b32 s{sT+2}, {1536*1280}, s{sT+2}', 's_cselect_b32 s66, 0, 48', 's_cselect_b32 s76, 5120, s76', 's_cselect_b32 s77, 20480, s77',
      f's_mov_b32 s{sT+3}, 0x20000',
      's_sub_u32 s64, s64, s66', f's_mul_i32 s64, s64, {32*1280}', 's_lshl_b32 s65, s65, 7', f's_add_u32 s{sJ0}, s64, s65')
def retile_addr():
    return [[f'v_and_b32 v2, 15, v{vL}', f'v_lshrrev_b32 v3, 4, v{vL}', 'v_mul_u32_u24 v90, s76, v3', 'v_lshl_add_u32 v90, v2, 3, v90'],
            ['v_lshrrev_b32 v4, 2, v2', f'v_mul_u32_u24 v91, {68*1024}, v4', 'v_and_b32 v2, 3, v2', 'v_lshl_add_u32 v2, v3, 4, v2',
             'v_lshl_add_u32 v91, v2, 4, v91']]
def retile_loads():
    return [VM(f'buffer_load_dwordx2 {v(RTI+2*e, 2)}, v90, {s(sT, 4)}, s{sJ0} offen offset:{(e & 3)*1280}', 'rt',
               [f's_add_u32 s{sJ0}, s{sJ0}, s77'] if e == 4 else []) for e in range(8)]
def retile_work():
    out = []
    for c in range(4):
        for e2 in range(4):
            out.append(f'v_perm_b32 v{RTO[c]+e2}, v{RTI+4*e2+2+(c >> 1)}, v{RTI+4*e2+(c >> 1)}, s{sP0 + (c & 1)}')
        out.append(VM(f'buffer_store_dwordx4 {v(RTO[c], 4)}, v91, {s(sWS, 4)}, s{sJ1} offen offset:{64*c} sc1', 'st'))
    return out

def stats_addr():
    return [[f'v_and_b32 v2, 15, v{vL}', f'v_lshrrev_b32 v3, 4, v{vL}', 'v_mul_u32_u24 v92, 1280, v3', 'v_lshl_add_u32 v92, v2, 4, v92',
             f's_mul_i32 s{sJ2}, s79, 5120'],
            ['v_cmp_eq_u32 vcc, 0, v2', f'v_and_b32 v93, 48, v{vL}', f'v_mov_b32 v3, {BIG:#x}', 's_lshl_b32 s79, s79, 6',
             'v_cndmask_b32 v93, v3, v93, vcc', f's_add_u32 s79, s79, {WS_ST}']]
def stats_loads(r):
    return [VM(f'buffer_load_dwordx4 {v(44+20*r+4*u, 4)}, v92, {s(sX, 4)}, s{sJ2} offen offset:{256*u}', f'sx{r}',
               [f's_add_u32 s{sJ2}, s{sJ2}, 5120'] if r and u == 0 else []) for u in range(5)]
def stats_work(r):
    S, Q, t0, t1 = 80, 81, 82, 83
    STI = 44 + 20*r
    o = []
    for k in range(20):
        o += [f'v_lshlrev_b32 v{t0}, 16, v{STI+k}', f'v_and_b32 v{t1}, s78, v{STI+k}']
        if k == 0: o += [f'v_add_f32 v{S}, v{t0}, v{t1}', f'v_mul_f32 v{Q}, v{t0}, v{t0}', f'v_fmac_f32 v{Q}, v{t1}, v{t1}']
        else: o += [f'v_add_f32 v{S}, v{S}, v{t0}', f'v_fmac_f32 v{Q}, v{t0}, v{t0}', f'v_add_f32 v{S}, v{S}, v{t1}', f'v_fmac_f32 v{Q}, v{t1}, v{t1}']
    for k in (8, 4, 2, 1):
        o += [f'v_add_f32_dpp v{S}, v{S}, v{S} row_ror:{k} row_mask:0xf bank_mask:0xf',
              f'v_add_f32_dpp v{Q}, v{Q}, v{Q} row_ror:{k} row_mask:0xf bank_mask:0xf']
    R = STI
    o += [f'v_mul_f32 v{R+1}, 0xbacccccd, v{S}',
          f'v_mul_f32 v{Q}, 0x3acccccd, v{Q}', f'v_fma_f32 v{Q}, -v{R+1}, v{R+1}, v{Q}', f'v_max_f32 v{Q}, 0, v{Q}',
          f'v_add_f32 v{R+3}, 0x3727c5ac, v{Q}', f'v_rsq_f32 v{R}, v{R+3}', f'v_mul_f32 v{R+2}, 0xbfb8aa3b, v{R}',
          VM(f'buffer_store_dwordx4 {v(R, 4)}, v93, {s(sWS, 4)}, s79 offen offset:{64*r} sc1', 'st')]
    return o

CSA, ONES = 112, 128
def colsum_setup(role):
    o = [f'v_mov_b32 v2, 0x3f803f80'] + [f'v_accvgpr_write_b32 a{ONES+k}, v2' for k in range(4)]
    o += [f'v_lshrrev_b32 v2, 4, v{vL}', f'v_mul_u32_u24 v2, {16 if role == "f" else 80}, v2', f'v_and_b32 v3, 15, v{vL}', 'v_cmp_eq_u32 vcc, 0, v3',
          f'v_mov_b32 v3, {BIG:#x}', f's_mul_i32 s64, s{sK0}, 19968', 'v_cndmask_b32 v94, v3, v2, vcc']
    if role == 'f':
        o += [f's_lshl_b32 s65, s{sCT}, 9', 's_add_u32 s64, s64, s65', f's_lshl_b32 s65, s{sW}, 7', 's_add_u32 s64, s64, s65',
              f's_add_u32 s{sCSO}, s64, {WS_CS + 1920*4}']
    else:
        o += [f's_mul_i32 s65, s{sCT}, {640 if role == "q" else 320}', 's_add_u32 s64, s64, s65', f's_add_u32 s{sCSO}, s64, {WS_CS + (0 if role == "q" else 2560)}']
    return o
def colsum_blocks(A, role):
    ffn = role == 'f'
    for step in range(8):
        wr = frag_regs(ffn, step % 2)[1]
        def body(blocks):
            for k, b in enumerate(blocks): A(MF(a(CSA+4*k, 4), a(wr[b], 4), a(ONES, 4), a(CSA+4*k, 4) if step & 1 else 0))
            if step & 1:
                A(f's_mul_i32 s66, s{sDIR}, {19968*(step // 2)}', f's_add_u32 s66, s66, s{sCSO}', 's_add_u32 s67, s66, 6144', 's_nop 4')
                for k, b in enumerate(blocks):
                    if ffn: so, off = 66 + (b >> 1), 64*(b & 1)
                    else: so, off = 66, (b // 5)*(320 if role == 'q' else 2560) + 16*(b % 5)
                    A(f'buffer_store_dwordx4 {a(CSA+4*k, 4)}, v94, {s(sWS, 4)}, s{so} offen offset:{off} sc1')
            A(f's_branch Lcr{role}{step}')
        A(f'Lcs{role}{step}:'); A.h = []
        if ffn: body(range(4))
        else:
            for w in range(4):
                if w < 3: A(f's_cmp_eq_u32 s{sW}, {w}', f's_cbranch_scc0 Lcs{role}{step}_{w}')
                body([b for b in (w, w + 4, w + 8) if b < 10])
                if w < 3: A(f'Lcs{role}{step}_{w}:')

def tail_loads(extra, sets):
    slot1 = [oload(j) for j in range(4, 13)]; slot2 = [oload(j) for j in range(13, 25)]
    q = slot1 + sets
    for st in range(C.eC, 20):
        if st == 17: q = slot2 + q
        n = C.nb if st != C.eC else max(C.nb - 4, 0)
        extra[st] = extra.get(st, []) + q[:n]
        q = q[n:]
    return q

def ffn_role(A):
    A('Lffn:'); A.vm = []
    ST, CS = 34, 74
    head, extra, preb = {}, {}, {}
    h0 = [f's_mul_i32 s{sY}, s{sMT}, 12', f's_add_u32 s{sY}, s{sY}, s{sCT}', f's_lshl_b32 s{sY}, s{sY}, 2', f's_add_u32 s{sY}, s{sY}, s{sW}']
    hs = ['s_and_b32 s64, s2, 7', 's_lshl_b32 s64, s64, 6', 's_lshr_b32 s65, s2, 3', 's_sub_u32 s65, s65, 12', 's_lshl_b32 s65, s65, 2',
          f's_add_u32 s65, s65, s{sW}', 's_add_u32 s64, s64, s65', 's_cmp_lt_u32 s65, 64', 's_cselect_b32 s79, s64, 0x8000']
    extra[0] = [colsum_setup('f')]
    extra[1] = [hs] + stats_addr() + [h0, retile_scalar()] + retile_addr()
    rl = retile_loads()
    extra[2] = stats_loads(0)
    extra[3] = z_issue(13) + rl[:4]; extra[4] = rl[4:]
    head[5] = covered(['sx0'], 'slab3')
    head[7] = seq(covered(['z', 'rt'], 'slab4'), z_check(13))
    sw = stats_work(0)
    chop(sw[:80], [5, 6], extra); chop(retile_work() + sw[80:], [7, 8], extra)
    extra[9] = extra.get(9, []) + wq_dma()
    add_e(head, preb, True)
    w0, w1, w2 = wq_build(34)
    extra[14] = w0; extra[15] = list(w1); extra[16] = list(w2)
    head[13] = seq(covered(['wq'], 'slab7'), head[13]) if 13 in head else covered(['wq'], 'slab7')
    ct = [82, 83, 84, 85, 90, 91, 92, 93, 80, 81]
    ld = [[f'v_and_b32 v2, 31, v{vL}', f'v_lshrrev_b32 v3, 5, v{vL}', 'v_mul_u32_u24 v3, 6144, v3', 'v_lshl_add_u32 v5, v2, 2, v3',
           f's_lshl_b32 s65, s{sCT}, 9', f's_lshl_b32 s66, s{sW}, 7', 's_add_u32 s65, s65, s66', f's_add_u32 s65, s65, {WS_CS + 1920*4}']]
    ld += [VM(f'buffer_load_dword v{ct[p]}, v5, {s(sWS, 4)}, s65 offen sc1', 'csl', ['s_add_u32 s65, s65, 19968'] if p else []) for p in range(10)]
    stl = [[f'v_and_b32 v20, 15, v{vL}', 'v_lshlrev_b32 v20, 4, v20', f's_mul_i32 s65, s{sMT}, 2560', f's_add_u32 s65, s65, {WS_ST}']]
    stl += [VM(f'buffer_load_dwordx3 {v(ST+4*tb, 3)}, v20, {s(sWS, 4)}, s65 offen offset:{256*tb+4} sc1', 'stl') for tb in range(10)]
    extra[C.eC] = extra.get(C.eC, []) + ld; extra[17] = extra.get(17, []) + stl
    csw = [lambda A: A.wait_vm('csl')] + [f'v_add_f32 v82, v82, v{ct[p]}' for p in range(1, 10)]
    csw += [[f's_mul_i32 s65, s{sW}, 768', f's_add_u32 s65, s65, {CSS}', f'v_lshl_add_u32 v2, v{vL}, 2, s65', f'v_and_b32 v3, 48, v{vL}',
             'v_add_u32 v94, s65, v3', 'ds_write_b32 v2, v82']]
    csr = [f'ds_read_b128 {v(CS+4*b, 4)}, v94 offset:{64*b}' for b in range(4)]
    extra[18] = csw; extra[19] = csr
    left = tail_loads(extra, [bload(i) for i in range(21)] + [oload(j) for j in range(4)] + [bload(i) for i in range(49, 60)])
    mainloop(A, True, head, extra, preb, 'f')
    A(f's_mul_i32 s65, s{sMT}, {10*68}', f's_lshl_b32 s66, s{sCT}, 2', 's_add_u32 s65, s65, s66', f's_add_u32 s65, s65, s{sW}',
      's_lshl_b32 s65, s65, 10')
    A.wait_vm('stl'); A('s_waitcnt lgkmcnt(0)')
    b2 = left + [bload(i) for i in range(21, 49)]
    T = 22
    for tb in range(10):
        if tb == 8: A(f's_cmp_eq_u32 s{sMT}, 12', 's_cbranch_scc1 Lffn_skip')
        g, u, st = acc(True, tb, 0), acc(True, tb, 2), ST + 4*tb
        O = 30 if tb % 2 == 0 else 16
        o = []
        o += [f'v_pk_fma_f32 {v(g+2*j, 2)}, {v(CS+2*j, 2)}, {v(st, 2)}, {v(g+2*j, 2)} op_sel_hi:[1,0,1]' for j in range(4)]
        o += [f'v_pk_fma_f32 {v(u+2*j, 2)}, {v(CS+8+2*j, 2)}, {v(st, 2)}, {v(u+2*j, 2)} op_sel_hi:[1,0,1]' for j in range(4)]
        o += [f'v_pk_mul_f32 {v(T+2*j, 2)}, {v(g+2*j, 2)}, {v(st, 2)} op_sel:[0,1] op_sel_hi:[1,1]' for j in range(4)]
        o += [f'v_exp_f32 v{T+j}, v{T+j}' for j in range(8)]
        o += [f'v_pk_mul_f32 {v(g+2*j, 2)}, {v(g+2*j, 2)}, {v(u+2*j, 2)}' for j in range(4)]
        o += [f'v_pk_fma_f32 {v(T+2*j, 2)}, {v(T+2*j, 2)}, {v(st+2, 2)}, {v(st+2, 2)} op_sel_hi:[1,0,0]' for j in range(4)]
        o += [f'v_rcp_f32 v{T+j}, v{T+j}' for j in range(8)]
        o += [f'v_pk_mul_f32 {v(g+2*j, 2)}, {v(g+2*j, 2)}, {v(T+2*j, 2)}' for j in range(4)]
        o += [f'v_cvt_pk_bf16_f32 v{O+j}, v{g+2*j}, v{g+2*j+1}' for j in range(4)]
        n = (C.ne*(tb + 1)) // 8 - (C.ne*tb) // 8 if tb < 8 else 0
        bl, b2 = b2[:n], b2[n:]
        A.weave(o, spread(bl, 2, 40))
        A.vmem(f'buffer_store_dwordx4 {v(O, 4)}, v{vL16}, {s(sWS, 4)}, s65 offen sc1', 'h')
        A(f's_add_u32 s65, s65, {68*1024}')
    A('Lffn_skip:')
    A(f's_mul_i32 s65, s{sMT}, 48', f's_lshl_b32 s66, s{sCT}, 2', 's_add_u32 s65, s65, s66', f's_add_u32 s65, s65, s{sW}', 's_lshl_b32 s65, s65, 7',
      f's_add_u32 s65, s65, {F_H}')
    stamp(A, 4)
    n = min(C.nw, len(b2))
    A.run(b2[:n]); A(f's_waitcnt vmcnt({n})'); flag_store(A, 's65')
    A.run(b2[n:])
    A('s_branch Lcommon')
    colsum_blocks(A, 'f')

WPA = 196
def qkv_role(A, isq):
    A('Lq:' if isq else 'Lkv:'); A.vm = []
    ST, CS = 34, 42
    head, extra, preb = {}, {}, {}
    extra[0] = [colsum_setup('q' if isq else 'k')]
    extra[3] = z_issue(90)
    head[7] = seq(covered(['z'], 'slab4'), z_check(90))
    extra[9] = wq_dma()
    if not isq:
        def wk_dma(A):
            A(f's_lshl_b32 s64, s{sCT}, 2', f's_add_u32 s64, s64, s{sW}', 's_mul_i32 s64, s64, 800',
              f's_mul_i32 s65, s{sW}, 800', 's_mov_b32 s66, m0', f's_add_u32 m0, s65, {SP}',
              'v_mov_b32 v34, 0', 'v_mov_b32 v35, 0', 'v_mov_b32 v36, 0', 'v_mov_b32 v37, 0', f'v_add_u32 v2, {SP+3200}, v{vL16}',
              's_mov_b32 exec_hi, 0x3ffff')
            A.vmem(f'buffer_load_dwordx4 v{vL16}, {s(sT, 4)}, s64 offen lds', 'wk')
            A('ds_write_b128 v2, v[34:37]', 's_mov_b32 exec_hi, -1', 's_mov_b32 m0, s66')
        extra[1] = [srdl(sT, P_WPHI, 32*800), Atomic(wk_dma, 16)]
        head[5] = covered(['wk'], 'slab3')
        wk = [[f'v_lshrrev_b32 v2, 4, v{vL}', f'v_and_b32 v3, 3, v{vL}', 'v_cmp_eq_u32 vcc, v2, v3', 'v_mul_u32_u24 v2, 800, v2',
               'v_mov_b32 v3, 3200', f'v_bfe_u32 v4, v{vL}, 2, 2', 'v_cndmask_b32 v2, v3, v2, vcc', 'v_mul_u32_u24 v4, 40, v4',
               f's_mov_b32 s64, {SP}', 'v_add3_u32 v34, v2, v4, s64']]
        for b in range(5):
            for sg in range(3):
                for j in range(2):
                    r = WPA + 4*(3*b + sg) + 2*j
                    if sg == 2 and j == 1: wk += [f'v_accvgpr_write_b32 a{r}, 0', f'v_accvgpr_write_b32 a{r+1}, 0']
                    else: wk.append(f'ds_read_b64_tr_b16 {a(r, 2)}, v34 offset:{(8*sg + 4*j)*40 + 8*b}')
        chop(wk, [5, 6, 7], extra)
    add_e(head, preb, False)
    head[13] = seq(covered(['wq'], 'slab7'), head[13]) if 13 in head else covered(['wq'], 'slab7')
    w0, w1, w2 = wq_build(34)
    extra[14] = w0; extra[15] = list(w1); extra[16] = list(w2)
    ld = [[f'v_min_u32 v2, 39, v{vL}', 'v_cmp_lt_u32 vcc, 19, v2', 'v_lshlrev_b32 v91, 4, v2', f's_mul_i32 s65, s{sCT}, {640 if isq else 320}',
           f'v_add_u32 v3, {0 if isq else 2240}, v91', f's_add_u32 s65, s65, {WS_CS + (0 if isq else 2560)}', 'v_cndmask_b32 v5, v91, v3, vcc']]
    ld += [VM(f'buffer_load_dwordx4 {v(42+4*p, 4)}, v5, {s(sWS, 4)}, s65 offen sc1', 'csl', ['s_add_u32 s65, s65, 19968'] if p else []) for p in range(10)]
    stl = [[f'v_and_b32 v20, 15, v{vL}', 'v_lshlrev_b32 v20, 4, v20', f's_lshl_b32 s65, s{sMT}, 12', f's_add_u32 s65, s65, s{sW10}',
            f's_add_u32 s65, s65, {WS_ST}']]
    stl += [VM(f'buffer_load_dwordx2 {v(ST+2*tb, 2)}, v20, {s(sWS, 4)}, s65 offen offset:{256*tb} sc1', 'stl') for tb in range(4)]
    extra[C.eC] = extra.get(C.eC, []) + ld; extra[17] = extra.get(17, []) + stl
    csw = [lambda A: A.wait_vm('csl')]
    csw += [f'v_add_f32 v{82+j}, v{42+j}, v{46+j}' for j in range(4)]
    csw += [f'v_add_f32 v{82+j}, v{82+j}, v{42+4*p+j}' for p in range(2, 10) for j in range(4)]
    csw += [[f's_mul_i32 s65, s{sW}, 768', f's_add_u32 s65, s65, {CSS}', 'v_add_u32 v2, s65, v91', f'v_lshrrev_b32 v3, 4, v{vL}',
             'v_mul_u32_u24 v3, 80, v3', 'v_add_u32 v94, s65, v3', 'ds_write_b128 v2, v[82:85]']]
    extra[18] = csw
    extra[19] = [f'ds_read_b128 {v(CS+4*b, 4)}, v94 offset:{(b // 5)*320 + (b % 5)*16}' for b in range(10)]
    b3 = [oload(j) for j in range(4)] + [bload(i) for i in range(49, 60)]
    left = tail_loads(extra, [bload(i) for i in range(21)] + (b3 if isq else []))
    mainloop(A, False, head, extra, preb, 'q' if isq else 'k')
    A.wait_vm('stl'); A('s_waitcnt lgkmcnt(0)')
    def conv(tb, grp, O):
        o = []; st = ST + 2*tb
        rr = [(acc(False, tb, 5*grp) + 2*j, CS + 20*grp + 2*j) for j in range(10)]
        o += [f'v_pk_fma_f32 {v(r, 2)}, {v(c, 2)}, {v(st, 2)}, {v(r, 2)} op_sel:[0,1,0] op_sel_hi:[1,1,1]' for r, c in rr]
        o += [f'v_pk_mul_f32 {v(r, 2)}, {v(r, 2)}, {v(st, 2)} op_sel_hi:[1,0]' for r, c in rr]
        o += [f'v_cvt_pk_bf16_f32 v{O+j}, v{r}, v{r+1}' for j, (r, c) in enumerate(rr)]
        return o
    b2 = left + [bload(i) for i in range(21, 49)]
    if isq:
        A(f'v_and_b32 v2, 15, v{vL}', f'v_lshrrev_b32 v3, 4, v{vL}', f'v_mul_u32_u24 v3, {QP}, v3', 'v_lshl_add_u32 v20, v2, 4, v3', 'v_lshl_add_u32 v19, v2, 3, v3',
          f's_lshl_b32 s65, s{sMT}, 2', f's_add_u32 s65, s65, s{sCT}', f's_mul_i32 s66, s65, {8*QP}', f's_add_u32 s66, s66, {WS_Q}',
          f's_lshr_b32 s67, s{sW10}, 1', 's_add_u32 s67, s67, s66', f's_add_u32 s66, s66, s{sW10}')
        for k in range(6): A(f's_add_u32 s{68+k}, s{67 if k % 3 == 2 else 66}, {(k // 3)*4*QP + (k % 3)*4096}')
        A('s_lshl_b32 s65, s65, 2', f's_add_u32 s65, s65, s{sW}', 's_lshl_b32 s65, s65, 7', f's_add_u32 s65, s65, {F_Q}')
        for tb in range(4):
            for grp in range(2):
                O = 22 if grp == 0 else 82
                A(*conv(tb, grp, O))
                for pc in range(2):
                    A.vmem(f'buffer_store_dwordx4 {v(O+4*pc, 4)}, v20, {s(sWS, 4)}, s{68+3*grp+pc} offen offset:{256*tb} sc1', 'q')
                A.vmem(f'buffer_store_dwordx2 {v(O+8, 2)}, v19, {s(sWS, 4)}, s{70+3*grp} offen offset:{128*tb} sc1', 'q')
        stamp(A, 4)
        A.run(b2[:8])
        A.wait_vm('q'); flag_store(A, 's65')
        A.run(b2[8:])
        A('s_branch Lcommon')
        colsum_blocks(A, 'q')
        return
    KB, VB = 22, 82
    A(f'v_mov_b32 v{KB+10}, 0', f'v_mov_b32 v{KB+11}, 0', f'v_mov_b32 v{VB+10}, 0x3f80', f'v_mov_b32 v{VB+11}, 0',
      f'v_and_b32 v2, 15, v{vL}', f'v_mul_u32_u24 v2, {IMG}, v2', f'v_lshrrev_b32 v3, 4, v{vL}', 'v_lshl_add_u32 v2, v3, 7, v2',
      f's_mul_i32 s65, s{sW}, {32*IMG}', 'v_add_u32 v20, s65, v2')
    A(f'v_bfe_u32 v2, v{vL}, 2, 2', 'v_and_b32 v4, 1, v3', 'v_lshl_add_u32 v2, v4, 2, v2', 'v_lshrrev_b32 v4, 1, v3', 'v_lshl_add_u32 v2, v2, 1, v4',
      f'v_mul_u32_u24 v2, {IMG}, v2', f'v_and_b32 v4, 3, v{vL}', 'v_lshl_add_u32 v2, v4, 3, v2', f's_lshl_b32 s65, s{sW}, 7', 'v_add_u32 v94, s65, v2')
    KA = 140
    def kvr(sg, F):
        return [f'ds_read_b64_tr_b16 {v(F + 4*f + 2*j, 2)}, v94 offset:{(32*sg + 16*j)*IMG + cb}' for f, cb in enumerate((0, 32, 64, 80, 112)) for j in range(2)]
    def kvm(F, first):
        return [MF(v(KA + 4*(2*b+db), 4), v(F+4*b, 4), v(F+12+4*db, 4), 0 if first else v(KA + 4*(2*b+db), 4)) for b in range(3) for db in range(2)]
    for tb in range(4):
        P = acc(False, tb, 0); N = acc(False, tb, 5); io = (tb & 1)*16*IMG
        c0 = conv(tb, 0, KB)
        A.weave(c0, spread(kvr(0, 96) + kvr(1, 116), 0, 28) if tb == 2 else [])
        A(*[MF(v(P+4*b, 4), a(WPA + 4*(3*b+sg), 4), v(KB+4*sg, 4), 0 if sg == 0 else v(P+4*b, 4)) for sg in range(3) for b in range(5)])
        A(*conv(tb, 1, VB))
        vw = [f'ds_write_b128 v20, {v(VB+4*j, 4)} offset:{io + 80 + 16*j}' for j in range(3)]
        if tb != 2: A(*vw)
        mx, mn = 2, 3
        o = [f'v_max3_f32 v{mx}, v{P}, v{P+1}, v{P+2}', f'v_min3_f32 v{mn}, v{P}, v{P+1}, v{P+2}']
        for j in range(3, 19, 2): o += [f'v_max3_f32 v{mx}, v{mx}, v{P+j}, v{P+j+1}', f'v_min3_f32 v{mn}, v{mn}, v{P+j}, v{P+j+1}']
        o += [f'v_max_f32 v{mx}, v{mx}, v{P+19}', f'v_min_f32 v{mn}, v{mn}, v{P+19}',
              f'v_mul_f32 v{mx}, 0xbfb8aa3b, v{mx}', f'v_mul_f32 v{mn}, {LOG2E}, v{mn}']
        o += [f'v_pk_fma_f32 {v(N+2*j, 2)}, {v(P+2*j, 2)}, {s(sL, 2)}, {v(2, 2)} op_sel:[0,0,1] op_sel_hi:[1,1,1] neg_lo:[0,1,0] neg_hi:[0,1,0]' for j in range(10)]
        o += [f'v_pk_fma_f32 {v(P+2*j, 2)}, {v(P+2*j, 2)}, {s(sL, 2)}, {v(2, 2)} op_sel_hi:[1,1,0]' for j in range(10)]
        nq = -(-len(b2) // 3); bl = b2[nq*tb:nq*tb+nq] if tb < 3 else b3
        A.weave(o, spread(bl[:4], 2, 40))
        e0 = [f'v_exp_f32 v{P+j}, v{P+j}' for j in range(20)]; e1 = [f'v_exp_f32 v{N+j}, v{N+j}' for j in range(20)]
        if tb == 2:
            A('s_waitcnt lgkmcnt(0)')
            A.weave(e0, spread(kvm(96, True), 0, 6) + spread(kvr(2, 96), 7, 13) + spread(kvm(116, False), 7, 13) + spread(kvr(3, 116), 14, 19))
            A('s_waitcnt lgkmcnt(0)', 's_barrier')
            A.weave(e1, spread(kvm(96, False) + kvm(116, False), 0, 14) + spread(vw, 2, 12) + spread(bl[4:8], 3, 19))
        else:
            A.weave(e0 + e1, spread(bl[4:8], 3, 39))
        o = [f'v_pk_add_f32 v[2:3], {v(P, 2)}, {v(P+2, 2)}', f'v_pk_add_f32 v[4:5], {v(N, 2)}, {v(N+2, 2)}']
        for j in range(2, 10): o += [f'v_pk_add_f32 v[2:3], v[2:3], {v(P+2*j, 2)}', f'v_pk_add_f32 v[4:5], v[4:5], {v(N+2*j, 2)}']
        o += ['v_add_f32 v2, v2, v3', 'v_add_f32 v4, v4, v5', 'v_rcp_f32 v2, v2', 'v_rcp_f32 v3, v4']
        o += [f'v_pk_mul_f32 {v(P+2*j, 2)}, {v(P+2*j, 2)}, v[2:3] op_sel_hi:[1,0]' for j in range(10)]
        o += [f'v_pk_mul_f32 {v(N+2*j, 2)}, {v(N+2*j, 2)}, v[2:3] op_sel:[0,1] op_sel_hi:[1,1]' for j in range(10)]
        sq = [r for q in range(4) for r in [P+5*q+j for j in range(5)] + [N+5*q+j for j in range(5)]]
        OUT = [16, 22, 26, 82, 86]
        for pc in range(5):
            o += [f'v_cvt_pk_bf16_f32 v{OUT[pc]+j}, v{sq[8*pc+2*j]}, v{sq[8*pc+2*j+1]}' for j in range(4)]
            o += [f'ds_write_b128 v20, {v(OUT[pc], 4)} offset:{io + 16*pc}']
        A.weave(o, spread(bl[8:], 2, 40))
        if tb == 1: A('s_waitcnt lgkmcnt(0)', 's_barrier')
    stamp(A, 4)
    A(f'v_lshrrev_b32 v2, 4, v{vL}', f'v_and_b32 v3, 15, v{vL}', 'v_mul_u32_u24 v4, 21, v2', 'v_add_lshl_u32 v34, v4, v3, 4', 'v_add_u32 v35, 256, v34', f'v_mov_b32 v5, {BIG:#x}',
      'v_cmp_gt_u32 vcc, 5, v3', 'v_cndmask_b32 v35, v5, v35, vcc', f'v_cmp_gt_u32 vcc, 32, v{vL}',
      'v_cndmask_b32 v36, v5, v34, vcc', 'v_cndmask_b32 v37, v5, v35, vcc',
      f's_lshl_b32 s65, s{sCT}, 2', f's_add_u32 s65, s65, s{sW}', 's_lshl_b32 s65, s65, 3', f's_add_u32 s65, s65, s{sMT}',
      f's_mul_i32 s66, s65, {KVP}', f's_add_u32 s66, s66, {WS_KV}', 's_lshl_b32 s65, s65, 7', f's_add_u32 s65, s65, {F_KV}')
    A('s_waitcnt lgkmcnt(0)', 's_barrier')
    R = [x for sg in range(4) for x in kvr(sg, 176 + 20*sg)]
    A(*R[:15])
    for sg in range(4):
        nxt = R[15+10*sg:25+10*sg]
        A(f's_waitcnt lgkmcnt({5 if sg < 3 else 0})')
        A.weave(kvm(176 + 20*sg, False), spread(nxt, 0, 5))
    for b in range(3):
        for db in range(2):
            A.vmem(f'buffer_store_dwordx4 {v(KA + 4*(2*b+db), 4)}, v{34 + db + (2 if b == 2 else 0)}, {s(sWS, 4)}, s66 offen offset:{1344*b} sc1', 'kv')
    A('s_waitcnt vmcnt(0)'); flag_store(A, 's65')
    A('s_branch Lcommon')
    colsum_blocks(A, 'k')

def spare_role(A):
    A('Lspare:'); A.vm = []
    A('s_waitcnt lgkmcnt(0)')
    common_consts(A)
    A('s_sub_u32 s70, s2, 252', 's_lshl_b32 s64, s70, 2', f's_add_u32 s64, s64, s{sW}', f's_add_u32 s{sY}, s64, 624',
      f's_mul_i32 s64, s64, {3*8192}', f's_add_u32 s64, s64, {WS_FL}', f'v_lshlrev_b32 v2, 7, v{vL}', 'v_mov_b32 v34, 0')
    for k in range(3): A(f'buffer_store_dword v34, v2, {s(sWS, 4)}, s64 offen sc1', 's_add_u32 s64, s64, 8192')
    A('s_waitcnt vmcnt(0)', 's_barrier', 's_lshl_b32 s64, s70, 2')
    wave0(lambda A: flag_store(A, 's64', sD))(A)
    A('Lsp_loop:')
    A.run(retile_scalar()); A.run(retile_addr())
    A.run(retile_loads())
    A('s_waitcnt vmcnt(0)')
    A.run(retile_work())
    A(f's_add_u32 s{sY}, s{sY}, 16', f's_cmp_lt_u32 s{sY}, 680', 's_cbranch_scc1 Lsp_loop')
    A.run(wq_dma()); A.run(z_issue(13))
    A('s_waitcnt vmcnt(0)', 's_barrier')
    z_check(13)(A)
    wave0(e_flag_)(A)
    for part in wq_build(34): A.run(part); A('s_waitcnt lgkmcnt(0)')
    e_issue(A); A('s_waitcnt vmcnt(0)'); wave0(e_check_)(A)
    A('s_barrier')
    for i in range(60): A.run(bload(i))
    for j in range(25): A.run(oload(j))

AB, AC2, PHI = 96, 176, 22
def aload(u, tb):
    r = AB + 16*(u % 5) + 4*tb
    k = u if u < 12 else u - 12
    return VM(f'buffer_load_dwordx4 {v(r, 4)}, v{vL16}, {s(sWS, 4)}, s64 offen offset:{(k % 4)*1024} sc1', f'A{u}',
              [f's_add_u32 s64, s{sA+tb}, {(k // 4)*4096}'])

def common(A):
    A('Lcommon:'); A.vm = []
    stamp(A, 5)
    A(f's_lshl_b32 s64, s{sMO}, 2', f's_lshr_b32 s65, s{sETA}, 3', 's_add_u32 s64, s64, s65', 's_lshl_b32 s64, s64, 2', f's_add_u32 s64, s64, s{sW}',
      's_lshl_b32 s64, s64, 7', f's_add_u32 s{sJ0}, s64, {F_Q}', 'v_mov_b32 v4, 0')
    Q_TXT = f'buffer_load_dword v87, v4, {s(sWS, 4)}, s{sJ0} offen sc1'
    A.vmem(Q_TXT, 'qp')
    A(f's_mul_i32 s64, s{sM2}, 52429', 's_lshr_b32 s64, s64, 17',
      f's_lshl_b32 s65, s{sM2}, 6', 's_add_u32 s65, s65, 63', 's_mul_i32 s65, s65, 52429', 's_lshr_b32 s65, s65, 23',
      's_sub_u32 s65, s65, s64', f's_mul_i32 s65, s65, {48*8}', 's_mul_i32 s64, s64, 48', f's_mul_i32 s66, s{sW}, 12', 's_add_u32 s64, s64, s66',
      's_lshl_b32 s64, s64, 7', f's_add_u32 s{sJ1}, s64, {F_H}',
      f'v_and_b32 v2, 15, v{vL}', 'v_min_u32 v2, 11, v2', f'v_and_b32 v3, 16, v{vL}', 'v_mul_u32_u24 v3, s65, v3', 'v_lshl_add_u32 v84, v2, 7, v3')
    H_TXT = f'buffer_load_dword v86, v84, {s(sWS, 4)}, s{sJ1} offen sc1'
    A.vmem(H_TXT, 'hp')
    A('v_mov_b32 v34, 0', 'v_mov_b32 v35, 0', 'v_mov_b32 v36, 0', 'v_mov_b32 v37, 0', 'v_min_u32 v2, 188, v0', 'v_lshlrev_b32 v2, 4, v2',
      f'v_add_u32 v2, {KVB}, v2', 'ds_write_b128 v2, v[34:37]')
    A(f'v_lshrrev_b32 v2, 4, v{vL}', f'v_and_b32 v3, 15, v{vL}', f's_lshl_b32 s64, s{sW}, 6', 'v_add_u32 v3, s64, v3',
      'v_cmp_eq_u32 vcc, 1, v2', 'v_lshlrev_b32 v5, 4, v3', 'v_cndmask_b32 v16, 0, 1, vcc', 'v_lshl_add_u32 v5, v16, 12, v5',
      'v_cmp_eq_u32 vcc, 2, v2', 'v_lshlrev_b32 v3, 3, v3', 'v_add_u32 v3, 8192, v3', 'v_mov_b32 v16, 256', 'v_mov_b32 v17, 128',
      'v_cndmask_b32 v88, v5, v3, vcc', 'v_cndmask_b32 v16, v16, v17, vcc', 's_mov_b64 s[70:71], vcc',
      'v_add_u32 v89, v88, v16', 'v_add_u32 v90, v89, v16', 'v_add_u32 v91, v90, v16',
      f's_lshl_b32 s64, s{sMO}, 5', f's_add_u32 s64, s64, s{sETA}', f's_mul_i32 s64, s64, {QP}', f's_add_u32 s{sJ2}, s64, {WS_Q}')
    A('s_waitcnt vmcnt(0)'); poll_check(A, [87], Q_TXT)
    stamp(A, 6)
    QF = 34
    for tb in range(4): A.vmem(f'buffer_load_dwordx4 {v(QF+4*tb, 4)}, v{88+tb}, {s(sWS, 4)}, s{sJ2} offen sc1', 'q')
    A('s_mov_b32 s78, 0', 'v_cmp_eq_u32 vcc, 0, v86', 's_cbranch_vccnz Lnoearly')
    keep = list(A.vm)
    for u in range(5):
        for tb in range(4): A.run(aload(u, tb))
    A.vm = keep
    A('s_mov_b32 s78, 1', 's_waitcnt vmcnt(20)', 's_branch Learly', 'Lnoearly:', 's_waitcnt vmcnt(0)', 'Learly:')
    p = lambda tb: [50+4*tb, 51+4*tb, 52+4*tb, 53+4*tb, 66+4*tb]
    n_ = lambda tb: [67+4*tb, 68+4*tb, 69+4*tb, 86+2*tb, 87+2*tb]
    R = range(4)
    A(*[f'v_cndmask_b32 v{QF+4*t+j}, v{QF+4*t+j}, 0, s[70:71]' for t in R for j in (2, 3)])
    for tb in R: A(MF(v(50+4*tb, 4), v(vWQ, 4), v(QF+4*tb, 4), 0), MF(v(66+4*tb, 4), v(vWQ+4, 4), v(QF+4*tb, 4), 0))
    x_, y_ = (lambda tb: 34+4*tb), (lambda tb: 35+4*tb)
    def allred(op):
        A(*[f'v_permlane32_swap_b32 v{x_(t)}, v{y_(t)}' for t in R]); A(*[f'{op} v{x_(t)}, v{x_(t)}, v{y_(t)}' for t in R])
        A(*[f'v_mov_b32 v{y_(t)}, v{x_(t)}' for t in R]); A(*[f'v_permlane16_swap_b32 v{x_(t)}, v{y_(t)}' for t in R])
        A(*[f'{op} v{x_(t)}, v{x_(t)}, v{y_(t)}' for t in R]); A(*[f'v_mov_b32 v{y_(t)}, v{x_(t)}' for t in R])
        A(*[f'v_permlane32_swap_b32 v{x_(t)}, v{y_(t)}' for t in R])
    A(*[f'v_max3_f32 v{x_(t)}, v{p(t)[0]}, v{p(t)[1]}, v{p(t)[2]}' for t in R])
    A(*[f'v_max3_f32 v{y_(t)}, -v{p(t)[0]}, -v{p(t)[1]}, -v{p(t)[2]}' for t in R])
    A(*[f'v_max3_f32 v{x_(t)}, v{x_(t)}, v{p(t)[3]}, v{p(t)[4]}' for t in R])
    A(*[f'v_max3_f32 v{y_(t)}, v{y_(t)}, -v{p(t)[3]}, -v{p(t)[4]}' for t in R])
    allred('v_max_f32')
    A(*[f'v_pk_mul_f32 {v(x_(t), 2)}, {v(x_(t), 2)}, {s(sL, 2)} neg_lo:[0,1] neg_hi:[0,1]' for t in R])
    for t in R:
        A(*[f'v_fma_f32 v{n_(t)[j]}, -v{p(t)[j]}, s{sL}, v{y_(t)}' for j in range(5)])
        A(*[f'v_pk_fma_f32 {v(p(t)[j], 2)}, {v(p(t)[j], 2)}, {s(sL, 2)}, {v(x_(t), 2)} op_sel_hi:[1,1,0]' for j in (0, 2)], f'v_fma_f32 v{p(t)[4]}, v{p(t)[4]}, s{sL}, v{x_(t)}')
    for t in R: A(*[f'v_exp_f32 v{r}, v{r}' for r in p(t) + n_(t)])
    A(*[f'v_add_f32 v{x_(t)}, v{p(t)[0]}, v{p(t)[1]}' for t in R]); A(*[f'v_add_f32 v{y_(t)}, v{n_(t)[0]}, v{n_(t)[1]}' for t in R])
    for j in range(2, 5):
        A(*[f'v_add_f32 v{x_(t)}, v{x_(t)}, v{p(t)[j]}' for t in R]); A(*[f'v_add_f32 v{y_(t)}, v{y_(t)}, v{n_(t)[j]}' for t in R])
    allred('v_add_f32')
    A(*[f'v_rcp_f32 v{x_(t)}, v{x_(t)}' for t in R]); A(*[f'v_rcp_f32 v{y_(t)}, v{y_(t)}' for t in R])
    for t in R:
        A(*[f'v_pk_mul_f32 {v(p(t)[j], 2)}, {v(p(t)[j], 2)}, {v(x_(t), 2)} op_sel_hi:[1,0]' for j in (0, 2)], f'v_mul_f32 v{p(t)[4]}, v{p(t)[4]}, v{x_(t)}',
          f'v_mul_f32 v{n_(t)[0]}, v{n_(t)[0]}, v{y_(t)}',
          *[f'v_pk_mul_f32 {v(n_(t)[j], 2)}, {v(n_(t)[j], 2)}, {v(x_(t), 2)} op_sel:[0,1] op_sel_hi:[1,1]' for j in (1, 3)])
    for t in R:
        sq = p(t) + n_(t)
        A(*[f'v_cvt_pk_bf16_f32 v{PHI+6*t+j}, v{sq[2*j]}, v{sq[2*j+1]}' for j in range(5)], f'v_mov_b32 v{PHI+6*t+5}, 0')
    A(f'v_mov_b32 v{PHI+24}, 0', f'v_mov_b32 v{PHI+25}, 0')
    stamp(A, 7)
    A('s_cmp_eq_u32 s78, 1', 's_cbranch_scc1 Lhave_a')
    keep = list(A.vm)
    poll_block(A, [2], f'buffer_load_dword v2, v84, {s(sWS, 4)}, s{sJ1} offen sc1')
    A.vm = keep
    for u in range(5):
        for tb in range(4): A.run(aload(u, tb))
    A('Lhave_a:')
    stamp(A, 8)
    A('v_min_u32 v2, 209, v0', 'v_lshlrev_b32 v85, 4, v2', 'v_mul_u32_u24 v3, 3121, v2', 'v_lshrrev_b32 v3, 16, v3',
      'v_mul_u32_u24 v5, 21, v3', 'v_sub_u32 v2, v2, v5', f'v_mul_u32_u24 v2, {KVBP}, v2', f'v_add_u32 v2, {KVB}, v2')
    for k in range(2):
        A(f'v_lshl_add_u32 v5, v3, 2, {2*k}', 'v_mul_u32_u24 v16, 6554, v5', 'v_lshrrev_b32 v16, 16, v16', 'v_mul_u32_u24 v16, 12, v16',
          'v_lshl_add_u32 v5, v5, 1, v16', f'v_add_u32 v{86+k}, v2, v5')
    A(f's_and_b32 s64, s{sETA}, 1', 's_lshl_b32 s65, s64, 2', 's_lshl_b32 s66, s64, 4', 's_sub_u32 s66, 16, s66', f's_mul_i32 s67, s{sETA}, 20')
    def d0(dst, g): A(f'v_cmp_gt_u32 vcc, 2, v{g}', f'v_lshl_add_u32 v{dst}, v{g}, 3, s65', 'v_mov_b32 v17, s66', f'v_cndmask_b32 v{dst}, v17, v{dst}, vcc')
    A(f'v_lshrrev_b32 v2, 4, v{vL}', f'v_bfe_u32 v3, v{vL}, 2, 2')
    d0(5, 3)
    A(f'v_and_b32 v16, 3, v{vL}', 'v_add_u32 v5, v5, v16', f'v_mul_u32_u24 v5, {KVBP}, v5', 'v_lshl_add_u32 v16, v2, 5, v5', f'v_add_u32 v88, {KVB}, v16',
      f'v_add_u32 v16, {4*KVBP}, v88', 'v_cndmask_b32 v89, v88, v16, vcc', f'v_lshlrev_b32 v16, 5, v2', f'v_add_u32 v90, {KVB + 20*KVBP}, v16')
    d0(5, 2)
    A('v_add_u32 v5, s67, v5', 'v_lshrrev_b32 v16, 5, v5', 'v_lshlrev_b32 v16, 10, v16', 'v_bfe_u32 v17, v5, 3, 2', 'v_lshl_add_u32 v16, v17, 8, v16',
      'v_bfe_u32 v17, v5, 2, 1', 'v_lshl_add_u32 v16, v17, 3, v16', f'v_and_b32 v17, 15, v{vL}', 'v_lshl_add_u32 v16, v17, 4, v16',
      f'v_mov_b32 v3, {BIG:#x}', 'v_cndmask_b32 v91, v3, v16, vcc', 'v_cmp_eq_u32 vcc, 2, v2', f'v_and_b32 v93, 7, v{vL}', 'v_cndmask_b32 v92, v3, v16, vcc',
      'v_lshlrev_b32 v93, 7, v93', f's_add_u32 s64, s{sW10}, {BO}', f'v_add_u32 v16, s64, v{vL16}', 'v_add_u32 v17, 0x10000, v16')
    A(f's_lshl_b32 s64, s{sETA}, 10', f's_add_u32 s72, s64, {F_KV}',
      f's_mul_i32 s64, s{sETA}, {8*KVP}', f's_add_u32 s73, s64, {WS_KV}',
      f's_lshl_b32 s64, s{sMO}, 2', f's_add_u32 s64, s64, s{sW}', f's_mul_i32 s74, s64, {4*68*1024}', f's_add_u32 s74, s74, {48*1024}',
      's_lshl_b32 s64, s64, 5', f's_add_u32 s64, s64, s{sETA}', 's_lshl_b32 s64, s64, 7', f's_add_u32 s75, s64, {F_O}',
      f's_lshl_b32 s64, s{sM2}, 12', f's_add_u32 s64, s64, s{sW10}', f's_add_u32 s79, s64, {F_O}')
    KV_TXT = f'buffer_load_dword v84, v93, {s(sWS, 4)}, s72 offen sc1'
    O_TXT = f'buffer_load_dword v84, v93, {s(sWS, 4)}, s79 offen sc1'
    def hstep(u, fill):
        A.wait_vm(f'A{u}')
        mf = [MF(v(AC2 + 20*tb + 4*nb, 4), a(breg(5*u+nb), 4), v(AB + 16*(u % 5) + 4*tb, 4), 0 if u == 0 else v(AC2 + 20*tb + 4*nb, 4))
              for tb in range(4) for nb in (range(5) if tb % 2 == 0 else range(4, -1, -1))]
        ev = list(fill)
        if u + 5 < 12: ev += [(5*tb + 5, aload(u + 5, tb)) for tb in range(4)]
        if 1 <= u <= 5:
            ev += spread([f'ds_read_b128 {a(breg(i), 4)}, v{16 + (i >> 4)} offset:{(i & 15)*4096}' for i in range(5*(u-1), min(5*u, 21))], 1, 19)
        A.weave(mf, ev)
    hstep(0, []); hstep(1, []); hstep(2, [])
    hstep(3, [(0, VM(KV_TXT, 'kvp'))])
    hstep(4, []); hstep(5, [])
    A.wait_vm('kvp'); poll_check(A, [84], KV_TXT)
    stamp(A, 9)
    KP = 48
    kl = [VM(f'buffer_load_dwordx4 {v(KP+4*m, 4)}, v85, {s(sWS, 4)}, s73 offen sc1', 'kp', [f's_add_u32 s73, s73, {KVP}'] if m else []) for m in range(8)]
    A.run(kl)
    hstep(6, [])
    A(*[f's_add_u32 s{sA+k}, s{sA+k}, s{sBO}' for k in range(4)])
    A.wait_vm('kp')
    A(*[f'v_pk_add_f32 {v(KP+2*j, 2)}, {v(KP+2*j, 2)}, {v(KP+16+2*j, 2)}' for j in range(8)])
    A(*[f'v_pk_add_f32 {v(KP+2*j, 2)}, {v(KP+2*j, 2)}, {v(KP+8+2*j, 2)}' for j in range(4)])
    A(*[f'v_pk_add_f32 {v(KP+2*j, 2)}, {v(KP+2*j, 2)}, {v(KP+4+2*j, 2)}' for j in range(2)])
    A(f'v_cvt_pk_bf16_f32 v2, v{KP}, v{KP+1}', f'v_cvt_pk_bf16_f32 v3, v{KP+2}, v{KP+3}')
    A('s_waitcnt lgkmcnt(0)', 's_barrier')
    A('ds_write_b32 v86, v2', 'ds_write_b32 v87, v3', 's_waitcnt lgkmcnt(0)', 's_barrier')
    KA = 48
    A(*[f'ds_read_b128 {v(KA + 8*b + 4*sg, 4)}, v{88+b} offset:{16*sg}' for b in range(3) for sg in range(2)])
    A('s_waitcnt lgkmcnt(0)')
    def num(tb):
        D = 72 if tb % 2 == 0 else 8
        return [MF(v(D+4*b, 4), v(KA + 8*b + 4*sg, 4), v(PHI + 6*tb + 4*sg, 4), 0 if sg == 0 else v(D+4*b, 4)) for sg in range(2) for b in (2, 0, 1)]
    def fin(tb):
        D = 72 if tb % 2 == 0 else 8
        A(f'v_add_f32 v{D+8}, 0x358637bd, v{D+8}', f'v_rcp_f32 v{D+8}, v{D+8}')
        A(*[f'v_pk_mul_f32 {v(D+2*j, 2)}, {v(D+2*j, 2)}, {v(D+8, 2)} op_sel_hi:[1,0]' for j in range(4)])
        A(*[f'v_cvt_pk_bf16_f32 v{D+8+j}, v{D+2*j}, v{D+2*j+1}' for j in range(4)])
        A.vmem(f'buffer_store_dwordx4 {v(D+8, 4)}, v91, {s(sWS, 4)}, s74 offen sc1', 'o')
        A.vmem(f'buffer_store_dwordx2 {v(D+8, 2)}, v92, {s(sWS, 4)}, s74 offen sc1', 'o')
        A(f's_add_u32 s74, s74, {68*1024}')
    A(*num(0)); A(*num(1)); fin(0); A(*num(2)); fin(1); A(*num(3)); fin(2); fin(3)
    stamp(A, 10)
    fa = []
    for r in range(3):
        fa += [[f'v_add_u32 v2, {256*r}, v0', 'v_mul_u32_u24 v3, 6554, v2', 'v_lshrrev_b32 v3, 16, v3', 'v_mul_u32_u24 v5, 10, v3', 'v_sub_u32 v2, v2, v5'],
               [f'v_mul_u32_u24 v5, 1280, v3', f'v_lshl_add_u32 v{53+r}, v2, 4, v5', f'v_mul_u32_u24 v3, {RP}, v3', 'v_lshrrev_b32 v5, 1, v2'],
               ['v_lshl_add_u32 v3, v5, 6, v3', 'v_and_b32 v2, 1, v2', f'v_lshl_add_u32 v{50+r}, v2, 3, v3']]
    fa += [[f'v_mov_b32 v3, {BIG:#x}', 'v_cmp_gt_u32 vcc, 128, v0', f's_mul_i32 s76, s{sM2}, {64*1280}', 'v_cndmask_b32 v55, v3, v55, vcc',
            f's_mul_i32 s77, s{sNT}, 160', 's_add_u32 s76, s76, s77'], srdl(sX, P_X, 2048*1280), srdl(sT, P_OUT, 2048*1280)]
    fa += [[f'v_and_b32 v2, 15, v{vL}', f'v_mul_u32_u24 v2, {RP}, v2', f'v_and_b32 v3, 48, v{vL}', 'v_add_u32 v2, v2, v3', f's_mul_i32 s64, s{sW}, {RW}',
            'v_add_u32 v48, s64, v2']]
    xl = [VM(f'buffer_load_dwordx4 {v(56+4*r, 4)}, v{53+r}, {s(sX, 4)}, s76 offen', 'x') for r in range(3)]
    hstep(7, spread(fa, 0, 19))
    hstep(8, [])
    A.wait_vm('o'); flag_store(A, 's75')
    hstep(9, spread(xl, 0, 10))
    hstep(10, [])
    hstep(11, [(0, VM(O_TXT, 'op'))])
    A.wait_vm('op'); poll_check(A, [84], O_TXT)
    stamp(A, 11)
    for u in range(12, 17):
        for tb in range(4): A.run(aload(u, tb))
    wr = lambda tb: [f'ds_write_b128 v48, {v(AC2 + 20*tb + 4*nb, 4)} offset:{tb*16*RP + 64*nb}' for nb in range(5)]
    omf = lambda u, tb, nb: MF(v(AC2 + 20*tb + 4*nb, 4), a(obreg(5*(u-12)+nb), 4), v(AB + 16*(u % 5) + 4*tb, 4), v(AC2 + 20*tb + 4*nb, 4))
    for u in (12, 13):
        A.wait_vm(f'A{u}')
        A(*[omf(u, tb, nb) for tb in range(4) for nb in range(5)])
    A.wait_vm('A16')
    for tb in range(4):
        A.weave([omf(u, tb, nb) for u in (14, 15, 16) for nb in range(5)], spread(wr(tb - 1), 4, 14) if tb else [])
    A(*wr(3))
    A('s_waitcnt lgkmcnt(0)', 's_barrier')
    stamp(A, 12)
    def rd(r): return [f'ds_read_b64 {v(96 + 32*r + 8*w + 2*q, 2)}, v{50+r} offset:{w*RW + 16*q}' for w in range(4) for q in range(4)]
    def out(r):
        S = 96 + 32*r; X = 56 + 4*r
        A(*[f'v_pk_add_f32 {v(S+2*j, 2)}, {v(S+2*j, 2)}, {v(S+16+2*j, 2)}' for j in range(8)])
        A(*[f'v_pk_add_f32 {v(S+2*j, 2)}, {v(S+2*j, 2)}, {v(S+8+2*j, 2)}' for j in range(4)])
        col = lambda c: S + 2*(c & 3) + (c >> 2)
        for j in range(4):
            A(f'v_lshlrev_b32 v2, 16, v{X+j}', f'v_and_b32 v3, 0xffff0000, v{X+j}',
              f'v_add_f32 v2, v2, v{col(2*j)}', f'v_add_f32 v3, v3, v{col(2*j+1)}', f'v_cvt_pk_bf16_f32 v{X+j}, v2, v3')
        A(f'buffer_store_dwordx4 {v(X, 4)}, v{53+r}, {s(sT, 4)}, s76 offen')
    r0, r1 = rd(0), rd(1)
    A(*r0); A('s_waitcnt lgkmcnt(4)'); A(*r1[:8]); A('s_waitcnt lgkmcnt(8)'); A(*r1[8:])
    out(0)
    A(f's_cmp_lt_u32 s{sW}, 2', 's_cbranch_scc0 Lfin2')
    A('s_waitcnt lgkmcnt(0)'); A(*rd(2)); out(1); A('s_waitcnt lgkmcnt(0)'); out(2)
    A('s_branch Lfin', 'Lfin2:', 's_waitcnt lgkmcnt(0)')
    out(1)
    A('Lfin:')
    if C.probe:
        a_, b_ = [int(x) for x in C.probe.split('-')]
        A('s_waitcnt vmcnt(0)'); stamp(A, 13)
        A(f'v_readlane_b32 s64, v{vDG}, {a_}', f'v_readlane_b32 s65, v{vDG}, {b_}', f'v_readlane_b32 s66, v{vDG}, 0', 's_nop 4',
          's_sub_u32 s65, s65, s64', 's_cmp_lt_u32 s65, 4000', 's_cselect_b32 s65, s65, 0', 's_lshl_b32 s65, s65, 2', 's_add_u32 s65, s65, 6000',
          'Lprobe:', 's_memrealtime s[68:69]', 's_waitcnt lgkmcnt(0)', 's_sub_u32 s68, s68, s66', 's_cmp_lt_u32 s68, s65', 's_cbranch_scc1 Lprobe')
    elif C.diag:
        A('s_waitcnt vmcnt(0)'); stamp(A, 13)
        A(f's_lshl_b32 s64, s2, 2', f's_add_u32 s64, s64, s{sW}', 's_lshl_b32 s64, s64, 8', f's_add_u32 s64, s64, {WS_DG}', f'v_lshlrev_b32 v2, 2, v{vL}',
          f'buffer_store_dword v{vDG}, v2, {s(sWS, 4)}, s64 offen')

def build():
    _lab[0] = 0; _n[0] = 0
    A = Asm()
    A(f'{NAME}:')
    A('s_cmp_ge_u32 s2, 256', 's_cbranch_scc1 Lend')
    A('s_load_dwordx16 s[4:19], s[0:1], 0', 's_load_dwordx4 s[20:23], s[0:1], 64', 's_load_dwordx2 s[24:25], s[0:1], 80')
    A('s_getpc_b64 s[64:65]', 'Lpc:', 's_mov_b32 s66, Lend-Lpc', 's_mov_b32 s67, 0x20000', 's_lshr_b32 s68, s2, 3', 's_lshl_b32 s68, s68, 12',
      'v_lshlrev_b32 v2, 7, v0', 'v_lshrrev_b32 v3, 5, v0', 'v_lshl_add_u32 v2, v3, 20, v2', 'buffer_load_dword v94, v2, s[64:67], s68 offen')
    A(f'v_and_b32 v{vL}, 63, v0', 'v_lshrrev_b32 v2, 6, v0', f'v_readfirstlane_b32 s{sW}, v2')
    if C.diag: A(f'v_mov_b32 v{vDG}, 0'); stamp(A, 0)
    roles(A)
    A('s_cbranch_scc1 Lq')
    qkv_role(A, False)
    qkv_role(A, True)
    roles_ffn(A)
    ffn_role(A)
    spare_role(A)
    common(A)
    A('Lend:', 's_endpgm')
    return A

HEAD = open('parallel_sum__linear_kernel_hedgehog__glu_gated_swiglu__prompt.s.ref').read().split('; Override launch')[0]
def full_text():
    A = build()
    if C.align:
        import align
        A.L, bad, n8 = align.align(A.L)
        print('misaligned 8-byte instrs:', bad, 'of', n8)
    return (HEAD + f'; @launch grid=(256,1,1) block=(256,1,1) lds={LDS}\n'
            '; Generated by gen/kernel.py: one persistent launch, phase 1 (LN-folded QKV / gate-up GEMM + epilogues),\n'
            '; flag hand-offs through d_ws, phase 2 (out = x + [h | o] @ [w2 ; wo]).\n'
            '.amdgcn_target "amdgcn-amd-amdhsa--gfx950"\n.text\n'
            f'.globl {NAME}\n.p2align 8\n.type {NAME},@function\n' + A.text() +
            '.fill 64, 4, 0xBF800000\n.section .rodata,"a"\n.p2align 6\n'
            f'.amdhsa_kernel {NAME}\n  .amdhsa_next_free_vgpr 512\n  .amdhsa_next_free_sgpr 102\n  .amdhsa_accum_offset 256\n'
            '  .amdhsa_group_segment_fixed_size 0\n  .amdhsa_kernarg_size 88\n  .amdhsa_user_sgpr_count 2\n'
            '  .amdhsa_user_sgpr_kernarg_segment_ptr 1\n  .amdhsa_system_sgpr_workgroup_id_x 1\n.end_amdhsa_kernel\n'), A

if __name__ == '__main__':
    for kv in sys.argv[2:]:
        k, x = kv.split('=')
        setattr(C, k, type(getattr(C, k))(eval(x)) if not isinstance(getattr(C, k), str) else x)
    t, A = full_text()
    open(sys.argv[1], 'w').write(t)
    print('pads', A.pads, 'lines', len(A.L))
```
